```python
import torch

def _softmax(x, axis=-1):
    return torch.softmax(x, dim=axis)
def _gelu(x):
    return torch.nn.functional.gelu(x, approximate="tanh")
def _silu(x):
    return torch.nn.functional.silu(x)
def _sigmoid(x):
    return torch.sigmoid(x)
def _layernorm(x, axis=-1, eps=1e-5):
    m = x.mean(dim=axis, keepdim=True)
    v = x.var(dim=axis, keepdim=True, unbiased=False)
    return (x - m) / torch.sqrt(v + eps)
def _scatter_add(tgt, idx, src, axis=0):
    return tgt.clone().index_add_(axis, idx, src)
def _segment_sum(src, seg, n):
    out = torch.zeros((n,) + src.shape[1:], dtype=src.dtype)
    return out.index_add_(0, seg, src)
def _pad(x, pw):
    flat = tuple(v for pair in reversed(pw) for v in pair)
    return torch.nn.functional.pad(x, flat)

kernel_name = 'concat_heads__mha_block_cached__gqa_block_cached__near_ridge'

def setup_inputs():

    _w = (lambda a: (lambda t: t.to(torch.bfloat16) if t.is_floating_point() else t)(torch.as_tensor(a)))
    def _A_setup():
        B, Sq, D = 8, 112, 512
        H, Sk, Dh = 32, 512, 128
        return {
            "x": _w((lambda *s: torch.randn(*s, dtype=torch.bfloat16) * 0.8)(B, Sq, D)),
            "k_cache": _w((lambda *s: torch.randn(*s, dtype=torch.bfloat16) * 0.8)(B, H, Sk, Dh)),
            "v_cache": _w((lambda *s: torch.randn(*s, dtype=torch.bfloat16) * 0.05)(B, H, Sk, Dh)),
            "wq": _w((lambda *s: torch.randn(*s, dtype=torch.bfloat16) * 0.8)(D, H * Dh) * (D ** -0.5)),
            "wo": _w((lambda *s: torch.randn(*s, dtype=torch.bfloat16) * 0.05)(H * Dh, D) * ((H * Dh) ** -0.5)),
        }
    _A_in = _A_setup()

    def _B_setup():
        B, Sq, D = 8, 112, 512
        Hq, Hkv, Sk, Dh = 32, 32, 512, 128
        assert Hq % Hkv == 0, (Hq, Hkv)
        return {
            "x": _w((lambda *s: torch.randn(*s, dtype=torch.bfloat16) * 0.8)(B, Sq, D)),
            "k_cache": _w((lambda *s: torch.randn(*s, dtype=torch.bfloat16) * 0.8)(B, Hkv, Sk, Dh)),
            "v_cache": _w((lambda *s: torch.randn(*s, dtype=torch.bfloat16) * 0.05)(B, Hkv, Sk, Dh)),
            "wq": _w((lambda *s: torch.randn(*s, dtype=torch.bfloat16) * 0.8)(D, Hq * Dh) * (D ** -0.5)),
            "wo": _w((lambda *s: torch.randn(*s, dtype=torch.bfloat16) * 0.05)(Hq * Dh, D) * ((Hq * Dh) ** -0.5)),
        }
    _B_in = _B_setup()

    return {
        "A_x": _A_in["x"],
        "A_k_cache": _A_in["k_cache"],
        "A_v_cache": _A_in["v_cache"],
        "A_wq": _A_in["wq"],
        "A_wo": _A_in["wo"],
        "B_x": _B_in["x"],
        "B_k_cache": _B_in["k_cache"],
        "B_v_cache": _B_in["v_cache"],
        "B_wq": _B_in["wq"],
        "B_wo": _B_in["wo"],
    }

def reference(A_x, A_k_cache, A_v_cache, A_wq, A_wo, B_x, B_k_cache, B_v_cache, B_wq, B_wo):
    def _A_ref(x, k_cache, v_cache, wq, wo):
        B, Sq, D = x.shape
        H, Dh = 32, 128
        q = (lambda x, *d: x.permute(*d))((x @ wq).reshape(B, Sq, H, Dh), 0, 2, 1, 3)
        scores = torch.einsum("bhqd,bhkd->bhqk", q, k_cache) * (Dh ** -0.5)
        p = _softmax(scores, axis=-1)
        o = torch.einsum("bhqk,bhkd->bhqd", p, v_cache)
        return (lambda x, *d: x.permute(*d))(o, 0, 2, 1, 3).reshape(B, Sq, H * Dh) @ wo

    def _B_ref(x, k_cache, v_cache, wq, wo):
        B, Sq, D = x.shape
        Hq, Dh = 32, 128
        Hkv = k_cache.shape[1]
        rep = Hq // Hkv
        q = (lambda x, *d: x.permute(*d))((x @ wq).reshape(B, Sq, Hq, Dh), 0, 2, 1, 3)
        k = (lambda x, n, axis: torch.repeat_interleave(x, n, dim=axis))(k_cache, rep, axis=1)
        v = (lambda x, n, axis: torch.repeat_interleave(x, n, dim=axis))(v_cache, rep, axis=1)
        scores = torch.einsum("bhqd,bhkd->bhqk", q, k) * (Dh ** -0.5)
        p = _softmax(scores, axis=-1)
        o = torch.einsum("bhqk,bhkd->bhqd", p, v)
        return (lambda x, *d: x.permute(*d))(o, 0, 2, 1, 3).reshape(B, Sq, Hq * Dh) @ wo

    a = _A_ref(A_x, A_k_cache, A_v_cache, A_wq, A_wo)
    b = _B_ref(B_x, B_k_cache, B_v_cache, B_wq, B_wo)
    return torch.concatenate([a, b], axis=-1)
```

```python
import re

REG_RE = re.compile(r'^(-?\|?)([vsa])(\d+)\|?$')
RNG_RE = re.compile(r'^(-?\|?)([vsa])\[(\d+):(\d+)\]\|?$')

TRANS = ('v_exp_f32', 'v_log_f32', 'v_rcp_f32', 'v_rsq_f32', 'v_sqrt_f32', 'v_sin_f32', 'v_cos_f32')


def regs_of(tok):
    tok = tok.strip()
    m = REG_RE.match(tok)
    if m:
        return [(m.group(2), int(m.group(3)))]
    m = RNG_RE.match(tok)
    if m:
        return [(m.group(2), i) for i in range(int(m.group(3)), int(m.group(4)) + 1)]
    if tok == 'vcc':
        return [('s', 106), ('s', 107)]
    if tok == 'm0':
        return [('s', 124)]
    if tok == 'exec':
        return [('s', 126), ('s', 127)]
    return []


def v(a, n=1):
    return f'v{a}' if n == 1 else f'v[{a}:{a + n - 1}]'


def s(a, n=1):
    return f's{a}' if n == 1 else f's[{a}:{a + n - 1}]'


class Ins:
    __slots__ = ('text', 'op', 'kind', 'w', 'r', 'srcc', 'ab', 'tag', 'lds', 'nstates', 'meta')

    def __init__(self, text, tag=None, meta=None):
        self.text = text
        self.tag = tag
        self.meta = meta
        body = text.split(';')[0].strip()
        parts = body.split(None, 1)
        self.op = op = parts[0]
        ops = []
        mods = []
        if len(parts) > 1:
            toks = [t.strip() for t in parts[1].split(',')]
            for i, t in enumerate(toks):
                sub = t.split()
                if not sub:
                    continue
                ops.append(sub[0])
                mods += sub[1:]
        self.lds = 'lds' in mods
        self.w, self.r, self.srcc, self.ab = [], [], [], []
        self.nstates = 1
        R = lambda lst: [x for t in lst for x in regs_of(t)]
        if op.startswith('v_mfma'):
            self.kind = 'mfma'
            self.w = R(ops[:1])
            self.ab = R(ops[1:3])
            self.srcc = R(ops[3:4])
            self.r = self.ab + self.srcc
        elif op.startswith('v_permlane') and 'swap' in op:
            self.kind = 'valu'
            self.w = R(ops[:2])
            self.r = R(ops[:2])
        elif op.startswith('v_cmp'):
            self.kind = 'valu'
            self.w = R(ops[:1])
            self.r = R(ops[1:])
        elif op.startswith('v_cndmask'):
            self.kind = 'valu'
            self.w = R(ops[:1])
            self.r = R(ops[1:])
            if len(ops) == 3:
                self.r += regs_of('vcc')
        elif op.startswith('v_'):
            self.kind = 'valu'
            self.w = R(ops[:1])
            self.r = R(ops[1:])
            if op.startswith(('v_fmac', 'v_mac')):
                self.r += self.w
        elif op.startswith('ds_read'):
            self.kind = 'dsr'
            self.w = R(ops[:1])
            self.r = R(ops[1:])
        elif op.startswith('ds_write'):
            self.kind = 'dsw'
            self.r = R(ops)
        elif op.startswith('buffer_load') or op.startswith('global_load'):
            self.kind = 'vml'
            if self.lds:
                self.r = R(ops) + regs_of('m0')
            else:
                self.w = R(ops[:1])
                self.r = R(ops[1:])
        elif op.startswith('buffer_store') or op.startswith('global_store'):
            self.kind = 'vms'
            self.r = R(ops)
            self.meta = R(ops[:1]) if op.startswith('buffer') else R(ops[1:2])
        elif op.startswith('buffer_atomic') or op.startswith('global_atomic'):
            self.kind = 'vms'
            self.r = R(ops)
            self.meta = []
        elif op.startswith('s_load'):
            self.kind = 'smem'
            self.w = R(ops[:1])
            self.r = R(ops[1:])
        elif op == 's_nop':
            self.kind = 'nop'
            self.nstates = int(ops[0]) + 1
        elif op in ('s_waitcnt', 's_barrier', 's_endpgm', 's_branch', 's_setprio', 's_sleep') or op.startswith('s_cbranch') \
                or op.startswith('buffer_wbl2') or op.startswith('buffer_inv'):
            self.kind = 'ctl'
        elif op.startswith('s_cmp'):
            self.kind = 'salu'
            self.r = R(ops)
        elif op.startswith('s_'):
            self.kind = 'salu'
            self.w = R(ops[:1])
            self.r = R(ops[1:])
        else:
            raise ValueError('unknown op ' + text)


class Prog:
    def __init__(self):
        self.out = []
        self.pos = 0
        self.valu_w = {}
        self.trans_w = {}
        self.mfma_w = {}
        self.mfma_c = {}
        self.salu_m0 = -100
        self.store_data = {}
        self.lgkm = []
        self.vm = []
        self.nins = 0

    def raw(self, text):
        self.out.append(text)

    def comment(self, text):
        self.out.append('  ; ' + text)

    def label(self, name, pad=True):
        self.out.append(name + ':')

    def reset_state(self):
        self.valu_w, self.trans_w, self.mfma_w, self.mfma_c, self.store_data = {}, {}, {}, {}, {}
        self.lgkm, self.vm = [], []

    def _put(self, ins):
        self.out.append('  ' + ins.text)
        self.nins += 1
        self.pos += ins.nstates

    def wait_lgkm(self, n):
        n = min(n, 15)
        if len(self.lgkm) > n:
            self._put(Ins(f's_waitcnt lgkmcnt({n})'))
            self.lgkm = self.lgkm[len(self.lgkm) - n:] if n else []

    def wait_vm_index(self, idx):
        later = sum(1 for k, _, _ in self.vm[idx + 1:] if k == 'l')
        later = min(later, 63)
        self._put(Ins(f's_waitcnt vmcnt({later})'))
        keep = [e for e in self.vm[:idx + 1] if e[0] == 's']
        self.vm = keep + self.vm[idx + 1:]

    def wait_tag(self, tag):
        idx = None
        for i, (k, _, t) in enumerate(self.vm):
            if t == tag:
                idx = i
        if idx is not None:
            self.wait_vm_index(idx)

    def wait_vm_all(self):
        self._put(Ins('s_waitcnt vmcnt(0)'))
        self.vm = []

    def emit(self, text, tag=None):
        ins = text if isinstance(text, Ins) else Ins(text, tag)
        touched = set(ins.r) | set(ins.w)
        need = None
        for i, d in enumerate(self.lgkm):
            if d & touched:
                need = i
        if need is not None:
            self.wait_lgkm(len(self.lgkm) - 1 - need)
        need = None
        for i, (k, d, _) in enumerate(self.vm):
            if k == 'l' and d & touched:
                need = i
        if need is not None:
            self.wait_vm_index(need)
        req = 0

        def dist(p, n):
            nonlocal req
            have = self.pos - p
            need_ = n + 1 - have
            if need_ > req:
                req = need_

        k = ins.kind
        if k == 'mfma':
            for r in ins.r:
                if r in self.valu_w:
                    dist(self.valu_w[r], 2)
            for r in ins.ab:
                if r in self.mfma_w:
                    dist(self.mfma_w[r][0], 8)
            for r in ins.srcc:
                if r in self.mfma_w:
                    p, d = self.mfma_w[r]
                    if d != tuple(ins.srcc):
                        dist(p, 8)
            for r in ins.w:
                if r in self.mfma_w and self.mfma_w[r][1] != tuple(ins.w):
                    dist(self.mfma_w[r][0], 8)
        else:
            if k in ('valu', 'dsr', 'dsw', 'vml', 'vms'):
                for r in touched:
                    if r in self.mfma_w:
                        dist(self.mfma_w[r][0], 8)
            if k == 'valu':
                for r in ins.w:
                    if r in self.mfma_c:
                        dist(self.mfma_c[r], 3)
                    if r in self.store_data:
                        dist(self.store_data[r], 2)
                for r in ins.r:
                    if r[0] == 's' and r in self.valu_w:
                        dist(self.valu_w[r], 2)
                    if r in self.trans_w and ins.op.split('_e')[0] not in TRANS:
                        dist(self.trans_w[r], 1)
                if ins.op.startswith('v_permlane') or 'dpp' in ins.text or 'row_' in ins.text:
                    for r in ins.r:
                        if r in self.valu_w:
                            dist(self.valu_w[r], 2)
                if ins.op.startswith(('v_readfirstlane', 'v_readlane')):
                    for r in ins.r:
                        if r in self.valu_w:
                            dist(self.valu_w[r], 1)
            if k in ('dsr', 'vml'):
                for r in ins.w:
                    if r in self.store_data:
                        dist(self.store_data[r], 1)
            if k in ('vml', 'vms'):
                for r in ins.r:
                    if r[0] == 's' and r in self.valu_w:
                        dist(self.valu_w[r], 5)
                if ins.lds:
                    dist(self.salu_m0, 1)
            if k == 'salu':
                for r in ins.r:
                    if r in self.valu_w:
                        dist(self.valu_w[r], 4)
        while req > 0:
            n = min(req, 8)
            self._put(Ins(f's_nop {n - 1}'))
            req -= n
        p = self.pos
        self._put(ins)
        if k == 'mfma':
            for r in ins.w:
                self.mfma_w[r] = (p, tuple(ins.w))
                self.valu_w.pop(r, None)
                self.trans_w.pop(r, None)
            for r in ins.srcc:
                self.mfma_c[r] = p
        elif k == 'valu':
            for r in ins.w:
                self.valu_w[r] = p
                self.mfma_w.pop(r, None)
                if ins.op.split('_e')[0] in TRANS:
                    self.trans_w[r] = p
                else:
                    self.trans_w.pop(r, None)
        elif k == 'salu':
            for r in ins.w:
                self.valu_w.pop(r, None)
                if r == ('s', 124):
                    self.salu_m0 = p
        elif k == 'dsr':
            self.lgkm.append(set(ins.w))
            for r in ins.w:
                self.valu_w.pop(r, None)
                self.mfma_w.pop(r, None)
                self.trans_w.pop(r, None)
        elif k == 'dsw':
            self.lgkm.append(set())
        elif k == 'vml':
            self.vm.append(('l', set(ins.w), ins.tag))
            for r in ins.w:
                self.valu_w.pop(r, None)
                self.mfma_w.pop(r, None)
                self.trans_w.pop(r, None)
        elif k == 'vms':
            self.vm.append(('s', set(), ins.tag))
            if 'x4' in ins.op or 'x3' in ins.op:
                for r in ins.meta:
                    self.store_data[r] = p
        elif k == 'smem':
            pass
        return ins

    def text(self):
        return '\n'.join(self.out) + '\n'


def merge(*streams):
    streams = [list(x) for x in streams if x]
    out = []
    idx = [0] * len(streams)
    total = sum(len(x) for x in streams)
    for _ in range(total):
        best, bf = None, None
        for i, st in enumerate(streams):
            if idx[i] < len(st):
                f = (idx[i] + 0.5) / len(st)
                if bf is None or f < bf:
                    best, bf = i, f
        out.append(streams[best][idx[best]])
        idx[best] += 1
    return out
```

```python
import sys, os
sys.path.insert(0, os.path.dirname(__file__))
from asmlib import Prog, Ins, v, s, merge

NAME = 'concat_heads__mha_block_cached__gqa_block_cached__near_ridge'
CFG = dict(R=8, interleave=True, store_mod='', kv_mod='', k2_depth=5)
for a in sys.argv[2:]:
    k_, v_ = a.split('=')
    CFG[k_] = type(CFG[k_])(int(v_)) if not isinstance(CFG[k_], str) else v_.replace('+', ' ')

MFMA = 'v_mfma_f32_16x16x32_bf16'
SCALE_C = 128 ** -0.5 * 1.4426950408889634
import struct
def f32hex(x):
    return '0x%08x' % struct.unpack('<I', struct.pack('<f', x))[0]

sX, sK, sV, sW, sO = 16, 20, 24, 28, 32
sWAVE, sM0B, sSOFF, sXIT, sC, sOIT, sMASK = 36, 37, 38, 39, 40, 41, 42
S0 = 0
QO = 128
FR = 192
LACC = 224
ONES = 228
KADDR = 232
VADDR = 236
DK = 244
DV = 246
DWQ = 248
VM = 250
VT = 251
VMC = 252
VOFF = 253
VLOW = 254
VT2 = 255


def Qf(it, ks):
    return QO + 8 * (4 * it + ks)


def Oacc(e, t):
    return QO + 8 * (2 * e + t) + 4


def gen_k1():
    R = CFG['R']
    kvmod = (' ' + CFG['kv_mod']) if CFG['kv_mod'] else ''
    P = Prog()
    e = P.emit
    P.raw('.p2align 8')
    P.raw('.type attn_kernel,@function')
    P.label('attn_kernel')
    e('s_cmp_ge_u32 s2, 256')
    e('s_cbranch_scc1 L_k1_done')
    e('s_and_b32 s3, s2, 7')
    e('s_lshr_b32 s44, s2, 3')
    e('s_lshr_b32 s45, s3, 2')
    e('s_mul_i32 s46, s45, 40')
    e('s_load_dwordx8 s[4:11], s[0:1], s46')
    e('s_load_dwordx2 s[12:13], s[0:1], 96')
    e('s_and_b32 s47, s3, 3')
    e('s_lshl_b32 s47, s47, 3')
    e('s_lshr_b32 s48, s44, 2')
    e('s_add_u32 s47, s47, s48')
    e('s_and_b32 s48, s44, 3')
    e('v_lshrrev_b32 v1, 6, v0')
    e('v_and_b32 v2, 63, v0')
    e(f'v_readfirstlane_b32 s{sWAVE}, v1')
    e('v_lshrrev_b32 v3, 4, v2')
    e('v_and_b32 v4, 15, v2')
    e('v_bfe_u32 v5, v2, 2, 2')
    e('v_and_b32 v6, 3, v2')
    e(f's_lshl_b32 s{sM0B}, s{sWAVE}, 11')
    e(f's_and_b32 s49, s{sWAVE}, 1')
    e('v_and_b32 v7, 1, v3')
    e('v_lshrrev_b32 v8, 1, v3')
    e('v_lshl_or_b32 v7, v8, 2, v7')
    e('s_lshl_b32 s50, s49, 3')
    e('v_or_b32 v8, s50, v7')
    e('v_xor_b32 v8, v8, v4')
    e('v_lshlrev_b32 v8, 4, v8')
    e(f's_lshl_b32 s50, s{sWAVE}, 3')
    e('v_add_u32 v9, s50, v3')
    e(f'v_lshl_add_u32 v{DWQ}, v9, 13, v8')
    e(f'v_add_u32 v{DWQ + 1}, {4 * 8192 - 1024}, v{DWQ}')
    e('v_lshlrev_b32 v9, 8, v3')
    e(f'v_add_u32 v9, s{sM0B}, v9')
    e('v_xor_b32 v8, v7, v4')
    e(f'v_lshl_add_u32 v{DV}, v8, 4, v9')
    e('v_xor_b32 v8, 8, v8')
    e(f'v_lshl_add_u32 v{DV + 1}, v8, 4, v9')
    e('s_lshl_b32 s50, s49, 2')
    e('v_xor_b32 v8, s50, v3')
    e('v_lshlrev_b32 v8, 1, v8')
    e('v_or_b32 v8, s49, v8')
    e('v_xor_b32 v8, v8, v4')
    e(f'v_lshl_add_u32 v{DK}, v8, 4, v9')
    e('v_xor_b32 v8, 8, v8')
    e(f'v_lshl_add_u32 v{DK + 1}, v8, 4, v9')
    e('s_waitcnt lgkmcnt(0)')
    e('s_lshl_b32 s50, s47, 8')
    e(f's_add_u32 s{sW}, s10, s50')
    e(f's_addc_u32 s{sW + 1}, s11, 0')
    e(f's_sub_u32 s{sW + 2}, 0x400000, s50')
    e(f's_mov_b32 s{sW + 3}, 0x20000')
    e('s_mul_i32 s50, s48, 114688')
    e(f's_add_u32 s{sX}, s4, s50')
    e(f's_addc_u32 s{sX + 1}, s5, 0')
    e(f's_mov_b32 s{sX + 2}, {5 * 114688}')
    e(f's_mov_b32 s{sX + 3}, 0x20000')
    e('s_lshl_b32 s50, s48, 5')
    e('s_add_u32 s50, s50, s47')
    e('s_lshl_b32 s50, s50, 17')
    e(f's_add_u32 s{sK}, s6, s50')
    e(f's_addc_u32 s{sK + 1}, s7, 0')
    e(f's_mov_b32 s{sK + 2}, {4 * 4194304 + 131072}')
    e(f's_mov_b32 s{sK + 3}, 0x20000')
    e(f's_add_u32 s{sV}, s8, s50')
    e(f's_addc_u32 s{sV + 1}, s9, 0')
    e(f's_mov_b32 s{sV + 2}, {4 * 4194304 + 131072}')
    e(f's_mov_b32 s{sV + 3}, 0x20000')
    e('s_lshl_b32 s50, s45, 3')
    e('s_add_u32 s50, s50, s48')
    e('s_mul_i32 s50, s50, 224')
    e('s_add_u32 s50, s50, s47')
    e('s_lshl_b32 s50, s50, 12')
    e(f's_add_u32 s{sO}, s12, s50')
    e(f's_addc_u32 s{sO + 1}, s13, 0')
    e(f's_mov_b32 s{sO + 2}, {4 * 7 * 131072 + 6 * 131072 + 4096}')
    e(f's_mov_b32 s{sO + 3}, 0x20000')
    e(f's_mov_b32 s{sXIT}, {4 * 114688}')
    e(f's_mov_b32 s{sOIT}, {4 * 7 * 131072}')
    e(f's_mov_b32 s{sC}, {f32hex(SCALE_C)}')

    def dma_w(P, j):
        slot = 6 + (j & 3)
        P.emit(f's_add_u32 m0, s{sM0B}, {slot * 16384}')
        P.emit(f's_mov_b32 s{sSOFF}, {j * 524288}')
        for m in range(2):
            P.emit(f'buffer_load_dwordx4 v{DWQ + m}, s[{sW}:{sW + 3}], s{sSOFF} offen offset:{m * 1024} lds', tag=('w', j))

    def dma_kv(P, n):
        if n >= 32:
            return
        it, isv, t = n >> 4, (n >> 3) & 1, n & 7
        slot = n % R
        P.emit(f's_add_u32 m0, s{sM0B}, {slot * 16384}')
        P.emit(f's_mov_b32 s{sSOFF}, {it * 4 * 4194304 + t * 16384}')
        srd, d = (sV, DV) if isv else (sK, DK)
        for m in range(2):
            P.emit(f'buffer_load_dwordx4 v{d + m}, s[{srd}:{srd + 3}], s{sSOFF} offen offset:{m * 1024} lds{kvmod}', tag=('kv', n))

    def after_wbar(P, j):
        if j >= 1:
            if j + 3 <= 7:
                dma_w(P, j + 3)
            else:
                n = 6 + (j - 5)
                if n < R:
                    dma_kv(P, n)

    def after_kvbar(P, n):
        if n == 0:
            if R == 10:
                dma_kv(P, 9)
        else:
            dma_kv(P, n - 1 + R)

    e(f's_cmp_eq_u32 s{sWAVE}, 7')
    e('s_cbranch_scc1 L_k1_loader')

    e(f's_lshl_b32 s50, s{sWAVE}, 4')
    e('v_add_u32 v8, s50, v4')
    e('v_lshlrev_b32 v8, 10, v8')
    e(f'v_lshl_add_u32 v{VOFF}, v3, 4, v8')
    e('v_and_b32 v8, 1, v5')
    e('v_lshrrev_b32 v9, 1, v5')
    e('v_lshl_or_b32 v8, v9, 2, v8')
    e('v_and_b32 v9, 1, v3')
    e('v_lshl_or_b32 v8, v9, 3, v8')
    e('v_xor_b32 v8, v8, v6')
    e('v_lshlrev_b32 v8, 4, v8')
    e('v_and_b32 v10, 1, v6')
    e('v_lshl_or_b32 v8, v10, 3, v8')
    e(f'v_cmp_eq_u32_e64 s[{sMASK}:{sMASK + 1}], 1, v9')
    e('v_lshl_add_u32 v10, v3, 3, v5')
    e('v_lshl_add_u32 v10, v10, 8, v8')
    e('v_add_u32 v10, 98304, v10')
    for ks in range(4):
        for t in range(2):
            e(f'v_xor_b32 v{VADDR + 2 * ks + t}, {64 * ks + 8 * t}, v10')
    e('v_lshl_add_u32 v10, v3, 2, v5')
    e(f'v_lshl_add_u32 v{VLOW}, v10, 8, v8')
    e('v_lshrrev_b32 v9, 3, v4')
    e('v_and_b32 v10, 7, v4')
    e('v_lshlrev_b32 v11, 2, v9')
    e('v_xor_b32 v10, v10, v11')
    e('v_lshl_or_b32 v10, v10, 1, v9')
    e('v_xor_b32 v10, v10, v3')
    e('v_lshlrev_b32 v10, 4, v10')
    e('v_lshl_add_u32 v10, v4, 8, v10')
    for ks in range(4):
        e(f'v_xor_b32 v{KADDR + ks}, {64 * ks}, v10')
    e(f's_lshl_b32 s50, s{sWAVE}, 17')
    e('v_lshlrev_b32 v9, 4, v2')
    e(f'v_add_u32 v{VT2}, s50, v9')
    for k in range(4):
        e(f'v_mov_b32 v{ONES + k}, 0x3f803f80')

    def xload(P, kstep, it):
        dst = (kstep * 2 + it) * 4
        so = f's{sXIT}' if it else '0'
        P.emit(f'buffer_load_dwordx4 {v(dst, 4)}, v{VOFF}, s[{sX}:{sX + 3}], {so} offen offset:{kstep * 64}')

    for j in range(4):
        dma_w(P, j)
        for kk in range(2):
            for it in range(2):
                xload(P, 2 * j + kk, it)
    for n in range(2):
        dma_kv(P, n)
    for ks in range(8, 16):
        for it in range(2):
            xload(P, ks, it)
    for n in range(2, 6):
        dma_kv(P, n)

    for j in range(8):
        P.comment(f'W step {j}')
        P.wait_tag(('w', j))
        e('s_barrier')
        after_wbar(P, j)
        slot_off = (j & 3) * 16384
        seq = []
        for kk in range(2):
            for ks in range(4):
                for t in range(2):
                    idx = (kk * 8 + ks * 2 + t)
                    fr = FR + (idx % 8) * 4
                    a = VADDR + 2 * ks + t
                    off = slot_off + kk * 8192
                    rd = [f'ds_read_b64_tr_b16 {v(fr, 2)}, v{a} offset:{off}',
                          f'ds_read_b64_tr_b16 {v(fr + 2, 2)}, v{a} offset:{off + 1024}']
                    mm = []
                    for it in range(2):
                        acc = Qf(it, ks) + 4 * t
                        xb = ((2 * j + kk) * 2 + it) * 4
                        c = '0' if (j == 0 and kk == 0) else v(acc, 4)
                        mm.append(f'{MFMA} {v(acc, 4)}, {v(fr, 4)}, {v(xb, 4)}, {c}')
                    seq.append((rd, mm))
        AHEAD = 6
        for i in range(AHEAD):
            for x in seq[i][0]:
                e(x)
        for i in range(16):
            for x in seq[i][1]:
                e(x)
            if i + AHEAD < 16:
                for x in seq[i + AHEAD][0]:
                    e(x)
    qconv = []
    for it in range(2):
        for ks in range(4):
            q0, q1 = Qf(it, ks), Qf(it, ks) + 4
            qconv += [f'v_cvt_pk_bf16_f32 v{q1}, v{q1}, v{q1 + 1}',
                      f'v_cvt_pk_bf16_f32 v{q1 + 1}, v{q1 + 2}, v{q1 + 3}',
                      f'v_cvt_pk_bf16_f32 v{q1 + 2}, v{q0}, v{q0 + 1}',
                      f'v_cvt_pk_bf16_f32 v{q1 + 3}, v{q0 + 2}, v{q0 + 3}',
                      f'v_cndmask_b32_e64 v{q0}, v{q1 + 2}, v{q1}, s[{sMASK}:{sMASK + 1}]',
                      f'v_cndmask_b32_e64 v{q0 + 1}, v{q1 + 3}, v{q1 + 1}, s[{sMASK}:{sMASK + 1}]',
                      f'v_cndmask_b32_e64 v{q0 + 2}, v{q1}, v{q1 + 2}, s[{sMASK}:{sMASK + 1}]',
                      f'v_cndmask_b32_e64 v{q0 + 3}, v{q1 + 1}, v{q1 + 3}, s[{sMASK}:{sMASK + 1}]']
    for ee in range(4):
        for t in range(2):
            qconv.append(f'v_xor_b32 v{VADDR + 2 * ee + t}, {64 * ee + 8 * t}, v{VLOW}')
    qconv.append(f'v_mov_b32 v{VOFF}, v{VT2}')

    win = {'k': 0, 'v': 0}

    def set_window(which, slot):
        w = slot >> 2
        out = []
        if w != win[which]:
            d = (w - win[which]) * 65536
            regs = range(KADDR, KADDR + 4) if which == 'k' else range(VADDR, VADDR + 8)
            for r_ in regs:
                if d > 0:
                    out.append(f'v_add_u32 v{r_}, {d}, v{r_}')
                else:
                    out.append(f'v_subrev_u32 v{r_}, {-d}, v{r_}')
            win[which] = w
        return out

    def max_stream(t, first):
        b = S0 + t * 16
        out = []
        vals = list(range(b, b + 16))
        if first:
            out.append(f'v_max3_f32 v{VM}, v{vals[0]}, v{vals[1]}, v{vals[2]}')
            out.append(f'v_max_f32 v{VM}, v{VM}, v{vals[3]}')
            vals = vals[4:]
        for k in range(0, len(vals), 2):
            out.append(f'v_max3_f32 v{VM}, v{VM}, v{vals[k]}, v{vals[k + 1]}')
        return out

    def exp_stream(t):
        b = S0 + t * 16
        out = []
        for u in range(2):
            bb = b + 8 * u
            for k in range(8):
                out.append(f'v_fma_f32 v{bb + k}, v{bb + k}, s{sC}, -v{VMC}')
            for k in range(8):
                out.append(f'v_exp_f32 v{bb + k}, v{bb + k}')
            for k in range(4):
                out.append(f'v_cvt_pk_bf16_f32 v{bb + k}, v{bb + 2 * k}, v{bb + 2 * k + 1}')
        return out

    def epilogue(it):
        out = [f'v_rcp_f32 v{VT}, v{LACC}']
        so = f's{sOIT}' if it else '0'
        smod = (' ' + CFG['store_mod']) if CFG['store_mod'] else ''
        for ee in range(4):
            o0, o1 = Oacc(ee, 0), Oacc(ee, 1)
            for k in range(4):
                out.append(f'v_mul_f32 v{o0 + k}, v{o0 + k}, v{VT}')
            for k in range(4):
                out.append(f'v_mul_f32 v{o1 + k}, v{o1 + k}, v{VT}')
            out += [f'v_cvt_pk_bf16_f32 v{o0}, v{o0}, v{o0 + 1}',
                    f'v_cvt_pk_bf16_f32 v{o0 + 1}, v{o0 + 2}, v{o0 + 3}',
                    f'v_cvt_pk_bf16_f32 v{o0 + 2}, v{o1}, v{o1 + 1}',
                    f'v_cvt_pk_bf16_f32 v{o0 + 3}, v{o1 + 2}, v{o1 + 3}',
                    f'v_cndmask_b32_e64 v{o1}, v{o0}, v{o0 + 2}, s[{sMASK}:{sMASK + 1}]',
                    f'v_cndmask_b32_e64 v{o1 + 1}, v{o0 + 1}, v{o0 + 3}, s[{sMASK}:{sMASK + 1}]',
                    f'v_cndmask_b32_e64 v{o1 + 2}, v{o0 + 2}, v{o0}, s[{sMASK}:{sMASK + 1}]',
                    f'v_cndmask_b32_e64 v{o1 + 3}, v{o0 + 3}, v{o0 + 1}, s[{sMASK}:{sMASK + 1}]',
                    f'buffer_store_dwordx4 {v(o1, 4)}, v{VOFF}, s[{sO}:{sO + 3}], {so} offen offset:{ee * 1024}{smod}']
        return out

    pending = qconv
    for it in range(2):
        for t in range(8):
            n = it * 16 + t
            slot = n % R
            P.wait_tag(('kv', n))
            e('s_barrier')
            after_kvbar(P, n)
            for x in pending:
                e(x)
            pending = []
            for x in set_window('k', slot):
                e(x)
            so = (slot & 3) * 16384
            rd, mm = [], []
            for kt in range(4):
                for ks in range(4):
                    idx = kt * 4 + ks
                    fr = FR + (idx % 8) * 4
                    rd.append(f'ds_read_b128 {v(fr, 4)}, v{KADDR + ks} offset:{so + kt * 4096}')
                    acc = S0 + t * 16 + kt * 4
                    c = '0' if ks == 0 else v(acc, 4)
                    mm.append(f'{MFMA} {v(acc, 4)}, {v(fr, 4)}, {v(Qf(it, ks), 4)}, {c}')
            main = rd[:8]
            for i in range(16):
                main.append(mm[i])
                if i + 8 < 16:
                    main.append(rd[i + 8])
            side = max_stream(t - 1, t == 1) if t >= 1 else []
            for x in (rd[:8] + merge(main[8:], side)):
                e(x)
        for t in range(8):
            n = it * 16 + 8 + t
            slot = n % R
            P.wait_tag(('kv', n))
            e('s_barrier')
            after_kvbar(P, n)
            for x in set_window('v', slot):
                e(x)
            so = (slot & 3) * 16384
            seq = []
            for u in range(2):
                pb = S0 + t * 16 + 8 * u
                for ee in range(4):
                    for tt in range(2):
                        idx = u * 8 + ee * 2 + tt
                        fr = FR + (idx % 8) * 4
                        a = VADDR + 2 * ee + tt
                        off = so + u * 8192
                        rd = [f'ds_read_b64_tr_b16 {v(fr, 2)}, v{a} offset:{off}',
                              f'ds_read_b64_tr_b16 {v(fr + 2, 2)}, v{a} offset:{off + 4096}']
                        acc = Oacc(ee, tt)
                        c = '0' if (t == 0 and u == 0) else v(acc, 4)
                        mm = [f'{MFMA} {v(acc, 4)}, {v(fr, 4)}, {v(pb, 4)}, {c}']
                        if ee == 3 and tt == 1:
                            c = '0' if (t == 0 and u == 0) else v(LACC, 4)
                            mm.append(f'{MFMA} {v(LACC, 4)}, {v(ONES, 4)}, {v(pb, 4)}, {c}')
                        seq.append((rd, mm))
            AHEAD = 6
            head = [x for i in range(AHEAD) for x in seq[i][0]]
            main = []
            for i in range(16):
                main += seq[i][1]
                if i + AHEAD < 16:
                    main += seq[i + AHEAD][0]
            for x in head:
                e(x)
            if t == 0:
                for x in max_stream(7, False):
                    e(x)
                e(f'v_mov_b32 v{VT}, v{VM}')
                e(f'v_permlane32_swap_b32 v{VM}, v{VT}')
                e(f'v_max_f32 v{VM}, v{VM}, v{VT}')
                e(f'v_mov_b32 v{VT}, v{VM}')
                e(f'v_permlane16_swap_b32 v{VM}, v{VT}')
                e(f'v_max_f32 v{VM}, v{VM}, v{VT}')
                e(f'v_mul_f32 v{VMC}, s{sC}, v{VM}')
                for x in exp_stream(0):
                    e(x)
                if not CFG['interleave']:
                    for tt in range(1, 8):
                        for x in exp_stream(tt):
                            e(x)
            side = exp_stream(t + 1) if (t < 7 and CFG['interleave']) else []
            for x in merge(main, side):
                e(x)
        pending = epilogue(it)
    for x in pending:
        e(x)
    e('s_endpgm')

    L = Prog()
    L.label('L_k1_loader')
    for j in range(4):
        dma_w(L, j)
    for n in range(6):
        dma_kv(L, n)
    for j in range(8):
        L.wait_tag(('w', j))
        L.emit('s_barrier')
        after_wbar(L, j)
    for n in range(32):
        L.wait_tag(('kv', n))
        L.emit('s_barrier')
        after_kvbar(L, n)
    L.label('L_k1_done')
    L.emit('s_endpgm')
    return P.text() + L.text()


def gen_k2():
    D = CFG['k2_depth']
    P = Prog()
    e = P.emit
    ACC = 0
    OF = 64
    AF = OF + D * 16
    TA = AF + 32
    DW = TA + 4
    VO = DW + 2
    VR = VO + 1
    VS = VR + 1
    sOs, sWo, sD = 16, 20, 24
    sWV, sM0, sT, sT2, sMK = 36, 37, 38, 39, 42

    def acc(qq, ee, t):
        return ACC + ((qq * 2 + ee) * 2 + t) * 4

    P.raw('.p2align 8')
    P.raw('.type oproj_kernel,@function')
    P.label('oproj_kernel')
    e('s_cmp_ge_u32 s2, 224')
    e('s_cbranch_scc1 L_k2_done')
    e('s_and_b32 s3, s2, 7')
    e('s_lshr_b32 s44, s2, 3')
    e('s_lshr_b32 s45, s3, 2')
    e('s_mul_i32 s46, s45, 40')
    e('s_add_u32 s46, s46, 32')
    e('s_load_dwordx2 s[4:5], s[0:1], s46')
    e('s_load_dwordx2 s[6:7], s[0:1], 80')
    e('s_load_dwordx2 s[8:9], s[0:1], 96')
    e('s_mul_i32 s47, s44, 37')
    e('s_lshr_b32 s47, s47, 8')
    e('s_mul_i32 s48, s47, 7')
    e('s_sub_u32 s48, s44, s48')
    e('s_bfe_u32 s49, s3, 0x10001')
    e('s_mul_i32 s49, s49, 7')
    e('s_add_u32 s48, s48, s49')
    e('s_and_b32 s49, s3, 1')
    e('s_lshl_b32 s49, s49, 2')
    e('s_add_u32 s47, s47, s49')
    t0 = 200
    e(f'v_lshrrev_b32 v{t0}, 6, v0')
    e(f'v_and_b32 v{t0 + 1}, 63, v0')
    e(f'v_readfirstlane_b32 s{sWV}, v{t0}')
    L_, G_, I_, R_, C_ = t0 + 1, t0 + 2, t0 + 3, t0 + 4, t0 + 5
    e(f'v_lshrrev_b32 v{G_}, 4, v{L_}')
    e(f'v_and_b32 v{I_}, 15, v{L_}')
    e(f'v_bfe_u32 v{R_}, v{L_}, 2, 2')
    e(f'v_and_b32 v{C_}, 3, v{L_}')
    e(f's_mul_i32 s{sM0}, s{sWV}, {D * 4096}')
    a_, b_, c_ = t0 + 6, t0 + 7, t0 + 8
    e(f's_lshl_b32 s50, s{sWV}, 14')
    e(f'v_lshlrev_b32 v{a_}, 4, v{L_}')
    e(f'v_add_u32 v{VO}, s50, v{a_}')
    e(f'v_lshrrev_b32 v{a_}, 3, v{L_}')
    e(f'v_bfe_u32 v{b_}, v{L_}, 4, 1')
    e(f'v_and_b32 v{c_}, 7, v{L_}')
    e(f'v_xor_b32 v{b_}, v{b_}, v{c_}')
    e(f'v_lshlrev_b32 v{b_}, 4, v{b_}')
    e(f'v_lshl_add_u32 v{a_}, v{a_}, 10, v{b_}')
    e(f's_lshl_b32 s50, s{sWV}, 19')
    e(f'v_add_u32 v{DW}, s50, v{a_}')
    e(f'v_xor_b32 v{DW + 1}, 64, v{DW}')
    e(f'v_add_u32 v{DW + 1}, {8192 - 1024}, v{DW + 1}')
    e(f'v_lshrrev_b32 v{a_}, 1, v{R_}')
    e(f'v_and_b32 v{b_}, 1, v{G_}')
    e(f'v_cmp_eq_u32_e64 s[{sMK}:{sMK + 1}], 1, v{b_}')
    e(f'v_lshl_or_b32 v{a_}, v{b_}, 2, v{a_}')
    e(f'v_xor_b32 v{a_}, v{a_}, v{C_}')
    e(f'v_lshlrev_b32 v{a_}, 4, v{a_}')
    e(f'v_and_b32 v{b_}, 1, v{C_}')
    e(f'v_lshl_or_b32 v{a_}, v{b_}, 3, v{a_}')
    e(f'v_lshl_add_u32 v{b_}, v{G_}, 3, v{R_}')
    e(f'v_lshl_add_u32 v{a_}, v{b_}, 7, v{a_}')
    e(f'v_add_u32 v{a_}, s{sM0}, v{a_}')
    for ee in range(2):
        for t in range(2):
            e(f'v_xor_b32 v{TA + 2 * ee + t}, {64 * ee + 8 * t}, v{a_}')
    e(f'v_lshlrev_b32 v{a_}, 4, v{L_}')
    e(f's_lshl_b32 s50, s{sWV}, 11')
    e(f'v_add_u32 v{VR}, s50, v{a_}')
    e(f's_lshr_b32 s50, s{sWV}, 1')
    e('s_lshl_b32 s50, s50, 15')
    e(f's_and_b32 s51, s{sWV}, 1')
    e('s_lshl_b32 s51, s51, 6')
    e('s_add_u32 s50, s50, s51')
    e(f'v_lshlrev_b32 v{a_}, 11, v{I_}')
    e(f'v_lshl_add_u32 v{a_}, v{G_}, 4, v{a_}')
    e(f'v_add_u32 v{VS}, s50, v{a_}')
    e('s_waitcnt lgkmcnt(0)')
    e('s_mul_i32 s50, s45, 56')
    e('s_lshl_b32 s51, s48, 2')
    e('s_add_u32 s50, s50, s51')
    e('s_lshl_b32 s50, s50, 17')
    e(f's_add_u32 s{sOs}, s8, s50')
    e(f's_addc_u32 s{sOs + 1}, s9, 0')
    e(f's_mov_b32 s{sOs + 2}, {4 * 131072}')
    e(f's_mov_b32 s{sOs + 3}, 0x20000')
    e('s_lshl_b32 s50, s47, 7')
    e(f's_add_u32 s{sWo}, s4, s50')
    e(f's_addc_u32 s{sWo + 1}, s5, 0')
    e(f's_sub_u32 s{sWo + 2}, 0x400000, s50')
    e(f's_mov_b32 s{sWo + 3}, 0x20000')
    e('s_lshl_b32 s50, s48, 17')
    e('s_lshl_b32 s51, s45, 10')
    e('s_add_u32 s50, s50, s51')
    e('s_lshl_b32 s51, s47, 7')
    e('s_add_u32 s50, s50, s51')
    e(f's_add_u32 s{sD}, s6, s50')
    e(f's_addc_u32 s{sD + 1}, s7, 0')
    e(f's_sub_u32 s{sD + 2}, {896 * 2048}, s50')
    e(f's_mov_b32 s{sD + 3}, 0x20000')

    def issue(kk):
        st = kk % D
        e(f's_add_u32 m0, s{sM0}, {st * 4096}')
        e(f's_mov_b32 s{sT}, {kk * 32768}')
        e(f's_mov_b32 s{sT2}, {kk * 32768 + 16384 - 2048}')
        for m in range(4):
            so = sT if m < 2 else sT2
            e(f'buffer_load_dwordx4 v{DW + (m & 1)}, s[{sWo}:{sWo + 3}], s{so} offen offset:{m * 1024} lds', tag=('wo', kk))
        for qq in range(4):
            e(f's_mov_b32 s{sT}, {qq * 131072 + (kk >> 2) * 4096}')
            e(f'buffer_load_dwordx4 {v(OF + st * 16 + qq * 4, 4)}, v{VO}, s[{sOs}:{sOs + 3}], s{sT} offen offset:{(kk & 3) * 1024}')

    def reads(kk):
        st = kk % D
        out = []
        for ee in range(2):
            for t in range(2):
                fr = AF + (kk & 1) * 16 + (ee * 2 + t) * 4
                out += [f'ds_read_b64_tr_b16 {v(fr, 2)}, v{TA + 2 * ee + t} offset:{st * 4096}',
                        f'ds_read_b64_tr_b16 {v(fr + 2, 2)}, v{TA + 2 * ee + t} offset:{st * 4096 + 512}']
        return out

    for kk in range(D):
        issue(kk)
    P.wait_tag(('wo', 0))
    for x in reads(0):
        e(x)
    for kk in range(16):
        st = kk % D
        if kk + 1 < 16:
            P.wait_tag(('wo', kk + 1))
            for x in reads(kk + 1):
                e(x)
        for ee in range(2):
            for t in range(2):
                fr = AF + (kk & 1) * 16 + (ee * 2 + t) * 4
                for qq in range(4):
                    a = acc(qq, ee, t)
                    c = '0' if kk == 0 else v(a, 4)
                    e(f'{MFMA} {v(a, 4)}, {v(fr, 4)}, {v(OF + st * 16 + qq * 4, 4)}, {c}')
        if kk + D < 16:
            issue(kk + D)
    e('s_barrier')
    e(f'v_lshlrev_b32 v{TA}, 3, v{VR}')
    e(f'v_and_b32 v{TA + 1}, 0x3ff, v{VR}')
    e(f'v_and_b32 v{TA}, 0xffffc000, v{TA}')
    e(f'v_or_b32 v{TA}, v{TA}, v{TA + 1}')
    for tl in range(16):
        e(f'ds_write_b128 v{TA}, {v(ACC + tl * 4, 4)} offset:{tl * 1024}')
    P.wait_lgkm(0)
    e('s_barrier')
    RB = 64
    e(f'v_add_u32 v{TA + 2}, 65536, v{VR}')
    for p in range(8):
        for t in range(2):
            a = VR if p < 4 else TA + 2
            e(f'ds_read_b128 {v(RB + (p * 2 + t) * 4, 4)}, v{a} offset:{(p & 3) * 16384 + t * 1024}')
    for p in range(1, 8):
        for k in range(8):
            e(f'v_add_f32 v{RB + k}, v{RB + k}, v{RB + p * 8 + k}')
    o0, o1 = RB, RB + 4
    for x in [f'v_cvt_pk_bf16_f32 v{o0}, v{o0}, v{o0 + 1}',
              f'v_cvt_pk_bf16_f32 v{o0 + 1}, v{o0 + 2}, v{o0 + 3}',
              f'v_cvt_pk_bf16_f32 v{o0 + 2}, v{o1}, v{o1 + 1}',
              f'v_cvt_pk_bf16_f32 v{o0 + 3}, v{o1 + 2}, v{o1 + 3}',
              f'v_cndmask_b32_e64 v{o1}, v{o0}, v{o0 + 2}, s[{sMK}:{sMK + 1}]',
              f'v_cndmask_b32_e64 v{o1 + 1}, v{o0 + 1}, v{o0 + 3}, s[{sMK}:{sMK + 1}]',
              f'v_cndmask_b32_e64 v{o1 + 2}, v{o0 + 2}, v{o0}, s[{sMK}:{sMK + 1}]',
              f'v_cndmask_b32_e64 v{o1 + 3}, v{o0 + 3}, v{o0 + 1}, s[{sMK}:{sMK + 1}]',
              f'buffer_store_dwordx4 {v(o1, 4)}, v{VS}, s[{sD}:{sD + 3}], 0 offen']:
        e(x)
    P.label('L_k2_done')
    e('s_endpgm')
    return P.text()


HEADER = open('cdna_kernels/' + NAME + '.s.ref').read().split('; Override launch')[0]


def desc(name):
    return f'''.p2align 6
.amdhsa_kernel {name}
  .amdhsa_next_free_vgpr 256
  .amdhsa_next_free_sgpr 102
  .amdhsa_accum_offset 256
  .amdhsa_group_segment_fixed_size 0
  .amdhsa_kernarg_size 104
  .amdhsa_user_sgpr_count 2
  .amdhsa_user_sgpr_kernarg_segment_ptr 1
  .amdhsa_system_sgpr_workgroup_id_x 1
.end_amdhsa_kernel
'''


def main():
    out = HEADER
    out += '; @launch kernel=attn_kernel grid=(256,1,1) block=(512,1,1) lds=163840\n'
    out += '; @launch kernel=oproj_kernel grid=(224,1,1) block=(512,1,1) lds=163840\n'
    out += '.amdgcn_target "amdgcn-amd-amdhsa--gfx950"\n.text\n.globl attn_kernel\n.globl oproj_kernel\n'
    out += gen_k1() + gen_k2()
    out += '.section .rodata,"a"\n' + desc('attn_kernel') + desc('oproj_kernel')
    path = sys.argv[1] if len(sys.argv) > 1 else 'cdna_kernels/' + NAME + '.s'
    open(path, 'w').write(out)
    print('wrote', path, len(out), 'bytes')


main()
```

```python
import sys, os
sys.path.insert(0, os.path.dirname(__file__))
from asmlib import Prog, Ins, v, s, merge

NAME = 'concat_heads__mha_block_cached__gqa_block_cached__near_ridge'
CFG = dict(R=8, interleave=True, store_mod='', kv_mod='', k2_depth=5, prof=0)
for a in sys.argv[2:]:
    k_, v_ = a.split('=')
    CFG[k_] = type(CFG[k_])(int(v_)) if not isinstance(CFG[k_], str) else v_.replace('+', ' ')

MFMA = 'v_mfma_f32_16x16x32_bf16'
SCALE_C = 128 ** -0.5 * 1.4426950408889634
import struct
def f32hex(x):
    return '0x%08x' % struct.unpack('<I', struct.pack('<f', x))[0]

sX, sK, sV, sW, sO = 16, 20, 24, 28, 32
sWAVE, sM0B, sSOFF, sXIT, sC, sOIT, sMASK = 36, 37, 38, 39, 40, 41, 42
S0 = 0
QO = 128
FR = 192
LACC = 224
ONES = 228
KADDR = 232
VADDR = 236
DK = 244
DV = 246
DWQ = 248
VM = 250
VT = 251
VMC = 252
VOFF = 253
VLOW = 254
VT2 = 255


def Qf(it, ks):
    return QO + 8 * (4 * it + ks)


def Oacc(e, t):
    return QO + 8 * (2 * e + t) + 4


def gen_k1():
    R = CFG['R']
    kvmod = (' ' + CFG['kv_mod']) if CFG['kv_mod'] else ''
    P = Prog()
    e = P.emit
    P.raw('.p2align 8')
    P.raw('.type attn_kernel,@function')
    P.label('attn_kernel')
    e('s_cmp_ge_u32 s2, 256')
    e('s_cbranch_scc1 L_k1_done')
    e('s_and_b32 s3, s2, 7')
    e('s_lshr_b32 s44, s2, 3')
    e('s_lshr_b32 s45, s3, 2')
    e('s_mul_i32 s46, s45, 40')
    e('s_load_dwordx8 s[4:11], s[0:1], s46')
    e('s_load_dwordx2 s[12:13], s[0:1], 96')
    e('s_and_b32 s47, s3, 3')
    e('s_lshl_b32 s47, s47, 3')
    e('s_lshr_b32 s48, s44, 2')
    e('s_add_u32 s47, s47, s48')
    e('s_and_b32 s48, s44, 3')
    e('v_lshrrev_b32 v1, 6, v0')
    e('v_and_b32 v2, 63, v0')
    e(f'v_readfirstlane_b32 s{sWAVE}, v1')
    e('v_lshrrev_b32 v3, 4, v2')
    e('v_and_b32 v4, 15, v2')
    e('v_bfe_u32 v5, v2, 2, 2')
    e('v_and_b32 v6, 3, v2')
    e(f's_lshl_b32 s{sM0B}, s{sWAVE}, 11')
    e(f's_and_b32 s49, s{sWAVE}, 1')
    e('v_and_b32 v7, 1, v3')
    e('v_lshrrev_b32 v8, 1, v3')
    e('v_lshl_or_b32 v7, v8, 2, v7')
    e('s_lshl_b32 s50, s49, 3')
    e('v_or_b32 v8, s50, v7')
    e('v_xor_b32 v8, v8, v4')
    e('v_lshlrev_b32 v8, 4, v8')
    e(f's_lshl_b32 s50, s{sWAVE}, 3')
    e('v_add_u32 v9, s50, v3')
    e(f'v_lshl_add_u32 v{DWQ}, v9, 13, v8')
    e(f'v_add_u32 v{DWQ + 1}, {4 * 8192 - 1024}, v{DWQ}')
    e('v_lshlrev_b32 v9, 8, v3')
    e(f'v_add_u32 v9, s{sM0B}, v9')
    e('v_xor_b32 v8, v7, v4')
    e(f'v_lshl_add_u32 v{DV}, v8, 4, v9')
    e('v_xor_b32 v8, 8, v8')
    e(f'v_lshl_add_u32 v{DV + 1}, v8, 4, v9')
    e('s_lshl_b32 s50, s49, 2')
    e('v_xor_b32 v8, s50, v3')
    e('v_lshlrev_b32 v8, 1, v8')
    e('v_or_b32 v8, s49, v8')
    e('v_xor_b32 v8, v8, v4')
    e(f'v_lshl_add_u32 v{DK}, v8, 4, v9')
    e('v_xor_b32 v8, 8, v8')
    e(f'v_lshl_add_u32 v{DK + 1}, v8, 4, v9')
    e('s_waitcnt lgkmcnt(0)')
    e('s_lshl_b32 s50, s47, 8')
    e(f's_add_u32 s{sW}, s10, s50')
    e(f's_addc_u32 s{sW + 1}, s11, 0')
    e(f's_sub_u32 s{sW + 2}, 0x400000, s50')
    e(f's_mov_b32 s{sW + 3}, 0x20000')
    e('s_mul_i32 s50, s48, 114688')
    e(f's_add_u32 s{sX}, s4, s50')
    e(f's_addc_u32 s{sX + 1}, s5, 0')
    e(f's_mov_b32 s{sX + 2}, {5 * 114688}')
    e(f's_mov_b32 s{sX + 3}, 0x20000')
    e('s_lshl_b32 s50, s48, 5')
    e('s_add_u32 s50, s50, s47')
    e('s_lshl_b32 s50, s50, 17')
    e(f's_add_u32 s{sK}, s6, s50')
    e(f's_addc_u32 s{sK + 1}, s7, 0')
    e(f's_mov_b32 s{sK + 2}, {4 * 4194304 + 131072}')
    e(f's_mov_b32 s{sK + 3}, 0x20000')
    e(f's_add_u32 s{sV}, s8, s50')
    e(f's_addc_u32 s{sV + 1}, s9, 0')
    e(f's_mov_b32 s{sV + 2}, {4 * 4194304 + 131072}')
    e(f's_mov_b32 s{sV + 3}, 0x20000')
    e('s_lshl_b32 s50, s45, 3')
    e('s_add_u32 s50, s50, s48')
    e('s_mul_i32 s50, s50, 224')
    e('s_add_u32 s50, s50, s47')
    e('s_lshl_b32 s50, s50, 12')
    e(f's_add_u32 s{sO}, s12, s50')
    e(f's_addc_u32 s{sO + 1}, s13, 0')
    e(f's_mov_b32 s{sO + 2}, {4 * 7 * 131072 + 6 * 131072 + 4096}')
    e(f's_mov_b32 s{sO + 3}, 0x20000')
    e(f's_mov_b32 s{sXIT}, {4 * 114688}')
    e(f's_mov_b32 s{sOIT}, {4 * 7 * 131072}')
    e(f's_mov_b32 s{sC}, {f32hex(SCALE_C)}')

    def dma_w(P, j):
        slot = 6 + (j & 3)
        P.emit(f's_add_u32 m0, s{sM0B}, {slot * 16384}')
        P.emit(f's_mov_b32 s{sSOFF}, {j * 524288}')
        for m in range(2):
            P.emit(f'buffer_load_dwordx4 v{DWQ + m}, s[{sW}:{sW + 3}], s{sSOFF} offen offset:{m * 1024} lds', tag=('w', j))

    def dma_kv(P, n):
        if n >= 32:
            return
        it, isv, t = n >> 4, (n >> 3) & 1, n & 7
        slot = n % R
        P.emit(f's_add_u32 m0, s{sM0B}, {slot * 16384}')
        P.emit(f's_mov_b32 s{sSOFF}, {it * 4 * 4194304 + t * 16384}')
        srd, d = (sV, DV) if isv else (sK, DK)
        for m in range(2):
            P.emit(f'buffer_load_dwordx4 v{d + m}, s[{srd}:{srd + 3}], s{sSOFF} offen offset:{m * 1024}{kvmod} lds', tag=('kv', n))

    def after_wbar(P, j):
        if j >= 1:
            if j + 3 <= 7:
                dma_w(P, j + 3)
            else:
                n = 6 + (j - 5)
                if n < R:
                    dma_kv(P, n)

    def after_kvbar(P, n):
        if n == 0:
            if R == 10:
                dma_kv(P, 9)
        else:
            dma_kv(P, n - 1 + R)

    e(f's_cmp_eq_u32 s{sWAVE}, 7')
    e('s_cbranch_scc1 L_k1_loader')

    e(f's_lshl_b32 s50, s{sWAVE}, 4')
    e('v_add_u32 v8, s50, v4')
    e('v_lshlrev_b32 v8, 10, v8')
    e(f'v_lshl_add_u32 v{VOFF}, v3, 4, v8')
    e('v_and_b32 v8, 1, v5')
    e('v_lshrrev_b32 v9, 1, v5')
    e('v_lshl_or_b32 v8, v9, 2, v8')
    e('v_and_b32 v9, 1, v3')
    e('v_lshl_or_b32 v8, v9, 3, v8')
    e('v_xor_b32 v8, v8, v6')
    e('v_lshlrev_b32 v8, 4, v8')
    e('v_and_b32 v10, 1, v6')
    e('v_lshl_or_b32 v8, v10, 3, v8')
    e(f'v_cmp_eq_u32_e64 s[{sMASK}:{sMASK + 1}], 1, v9')
    e('v_lshl_add_u32 v10, v3, 3, v5')
    e('v_lshl_add_u32 v10, v10, 8, v8')
    e('v_add_u32 v10, 98304, v10')
    for ks in range(4):
        for t in range(2):
            e(f'v_xor_b32 v{VADDR + 2 * ks + t}, {64 * ks + 8 * t}, v10')
    e('v_lshl_add_u32 v10, v3, 2, v5')
    e(f'v_lshl_add_u32 v{VLOW}, v10, 8, v8')
    e('v_lshrrev_b32 v9, 3, v4')
    e('v_and_b32 v10, 7, v4')
    e('v_lshlrev_b32 v11, 2, v9')
    e('v_xor_b32 v10, v10, v11')
    e('v_lshl_or_b32 v10, v10, 1, v9')
    e('v_xor_b32 v10, v10, v3')
    e('v_lshlrev_b32 v10, 4, v10')
    e('v_lshl_add_u32 v10, v4, 8, v10')
    for ks in range(4):
        e(f'v_xor_b32 v{KADDR + ks}, {64 * ks}, v10')
    e(f's_lshl_b32 s50, s{sWAVE}, 17')
    e('v_lshlrev_b32 v9, 4, v2')
    e(f'v_add_u32 v{VT2}, s50, v9')
    for k in range(4):
        e(f'v_mov_b32 v{ONES + k}, 0x3f803f80')

    def xload(P, kstep, it):
        dst = (kstep * 2 + it) * 4
        so = f's{sXIT}' if it else '0'
        P.emit(f'buffer_load_dwordx4 {v(dst, 4)}, v{VOFF}, s[{sX}:{sX + 3}], {so} offen offset:{kstep * 64}')

    for j in range(4):
        dma_w(P, j)
        for kk in range(2):
            for it in range(2):
                xload(P, 2 * j + kk, it)
    for n in range(2):
        dma_kv(P, n)
    for ks in range(8, 16):
        for it in range(2):
            xload(P, ks, it)
    for n in range(2, 6):
        dma_kv(P, n)

    for j in range(8):
        P.comment(f'W step {j}')
        P.wait_tag(('w', j))
        e('s_barrier')
        after_wbar(P, j)
        slot_off = (j & 3) * 16384
        seq = []
        for kk in range(2):
            for ks in range(4):
                for t in range(2):
                    idx = (kk * 8 + ks * 2 + t)
                    fr = FR + (idx % 8) * 4
                    a = VADDR + 2 * ks + t
                    off = slot_off + kk * 8192
                    rd = [f'ds_read_b64_tr_b16 {v(fr, 2)}, v{a} offset:{off}',
                          f'ds_read_b64_tr_b16 {v(fr + 2, 2)}, v{a} offset:{off + 1024}']
                    mm = []
                    for it in range(2):
                        acc = Qf(it, ks) + 4 * t
                        xb = ((2 * j + kk) * 2 + it) * 4
                        c = '0' if (j == 0 and kk == 0) else v(acc, 4)
                        mm.append(f'{MFMA} {v(acc, 4)}, {v(fr, 4)}, {v(xb, 4)}, {c}')
                    seq.append((rd, mm))
        AHEAD = 6
        for i in range(AHEAD):
            for x in seq[i][0]:
                e(x)
        for i in range(16):
            for x in seq[i][1]:
                e(x)
            if i + AHEAD < 16:
                for x in seq[i + AHEAD][0]:
                    e(x)
    qconv = []
    for it in range(2):
        for ks in range(4):
            q0, q1 = Qf(it, ks), Qf(it, ks) + 4
            qconv += [f'v_cvt_pk_bf16_f32 v{q1}, v{q1}, v{q1 + 1}',
                      f'v_cvt_pk_bf16_f32 v{q1 + 1}, v{q1 + 2}, v{q1 + 3}',
                      f'v_cvt_pk_bf16_f32 v{q1 + 2}, v{q0}, v{q0 + 1}',
                      f'v_cvt_pk_bf16_f32 v{q1 + 3}, v{q0 + 2}, v{q0 + 3}',
                      f'v_cndmask_b32_e64 v{q0}, v{q1 + 2}, v{q1}, s[{sMASK}:{sMASK + 1}]',
                      f'v_cndmask_b32_e64 v{q0 + 1}, v{q1 + 3}, v{q1 + 1}, s[{sMASK}:{sMASK + 1}]',
                      f'v_cndmask_b32_e64 v{q0 + 2}, v{q1}, v{q1 + 2}, s[{sMASK}:{sMASK + 1}]',
                      f'v_cndmask_b32_e64 v{q0 + 3}, v{q1 + 1}, v{q1 + 3}, s[{sMASK}:{sMASK + 1}]']
    for ee in range(4):
        for t in range(2):
            qconv.append(f'v_xor_b32 v{VADDR + 2 * ee + t}, {64 * ee + 8 * t}, v{VLOW}')
    qconv.append(f'v_mov_b32 v{VOFF}, v{VT2}')

    win = {'k': 0, 'v': 0}

    def set_window(which, slot):
        w = slot >> 2
        out = []
        if w != win[which]:
            d = (w - win[which]) * 65536
            regs = range(KADDR, KADDR + 4) if which == 'k' else range(VADDR, VADDR + 8)
            for r_ in regs:
                if d > 0:
                    out.append(f'v_add_u32 v{r_}, {d}, v{r_}')
                else:
                    out.append(f'v_subrev_u32 v{r_}, {-d}, v{r_}')
            win[which] = w
        return out

    def max_stream(t, first):
        b = S0 + t * 16
        out = []
        vals = list(range(b, b + 16))
        if first:
            out.append(f'v_max3_f32 v{VM}, v{vals[0]}, v{vals[1]}, v{vals[2]}')
            out.append(f'v_max_f32 v{VM}, v{VM}, v{vals[3]}')
            vals = vals[4:]
        for k in range(0, len(vals), 2):
            out.append(f'v_max3_f32 v{VM}, v{VM}, v{vals[k]}, v{vals[k + 1]}')
        return out

    def exp_stream(t):
        b = S0 + t * 16
        out = []
        for u in range(2):
            bb = b + 8 * u
            for k in range(8):
                out.append(f'v_fma_f32 v{bb + k}, v{bb + k}, s{sC}, -v{VMC}')
            for k in range(8):
                out.append(f'v_exp_f32 v{bb + k}, v{bb + k}')
            for k in range(4):
                out.append(f'v_cvt_pk_bf16_f32 v{bb + k}, v{bb + 2 * k}, v{bb + 2 * k + 1}')
        return out

    def epilogue(it):
        out = [f'v_rcp_f32 v{VT}, v{LACC}']
        so = f's{sOIT}' if it else '0'
        smod = (' ' + CFG['store_mod']) if CFG['store_mod'] else ''
        for ee in range(4):
            o0, o1 = Oacc(ee, 0), Oacc(ee, 1)
            for k in range(4):
                out.append(f'v_mul_f32 v{o0 + k}, v{o0 + k}, v{VT}')
            for k in range(4):
                out.append(f'v_mul_f32 v{o1 + k}, v{o1 + k}, v{VT}')
            out += [f'v_cvt_pk_bf16_f32 v{o0}, v{o0}, v{o0 + 1}',
                    f'v_cvt_pk_bf16_f32 v{o0 + 1}, v{o0 + 2}, v{o0 + 3}',
                    f'v_cvt_pk_bf16_f32 v{o0 + 2}, v{o1}, v{o1 + 1}',
                    f'v_cvt_pk_bf16_f32 v{o0 + 3}, v{o1 + 2}, v{o1 + 3}',
                    f'v_cndmask_b32_e64 v{o1}, v{o0}, v{o0 + 2}, s[{sMASK}:{sMASK + 1}]',
                    f'v_cndmask_b32_e64 v{o1 + 1}, v{o0 + 1}, v{o0 + 3}, s[{sMASK}:{sMASK + 1}]',
                    f'v_cndmask_b32_e64 v{o1 + 2}, v{o0 + 2}, v{o0}, s[{sMASK}:{sMASK + 1}]',
                    f'v_cndmask_b32_e64 v{o1 + 3}, v{o0 + 3}, v{o0 + 1}, s[{sMASK}:{sMASK + 1}]',
                    f'buffer_store_dwordx4 {v(o1, 4)}, v{VOFF}, s[{sO}:{sO + 3}], {so} offen offset:{ee * 1024}{smod}']
        return out

    pending = qconv
    for it in range(2):
        for t in range(8):
            n = it * 16 + t
            slot = n % R
            P.wait_tag(('kv', n))
            e('s_barrier')
            after_kvbar(P, n)
            for x in pending:
                e(x)
            pending = []
            for x in set_window('k', slot):
                e(x)
            so = (slot & 3) * 16384
            rd, mm = [], []
            for kt in range(4):
                for ks in range(4):
                    idx = kt * 4 + ks
                    fr = FR + (idx % 8) * 4
                    rd.append(f'ds_read_b128 {v(fr, 4)}, v{KADDR + ks} offset:{so + kt * 4096}')
                    acc = S0 + t * 16 + kt * 4
                    c = '0' if ks == 0 else v(acc, 4)
                    mm.append(f'{MFMA} {v(acc, 4)}, {v(fr, 4)}, {v(Qf(it, ks), 4)}, {c}')
            main = rd[:8]
            for i in range(16):
                main.append(mm[i])
                if i + 8 < 16:
                    main.append(rd[i + 8])
            side = max_stream(t - 1, t == 1) if t >= 1 else []
            for x in (rd[:8] + merge(main[8:], side)):
                e(x)
        for t in range(8):
            n = it * 16 + 8 + t
            slot = n % R
            P.wait_tag(('kv', n))
            e('s_barrier')
            after_kvbar(P, n)
            for x in set_window('v', slot):
                e(x)
            so = (slot & 3) * 16384
            seq = []
            for u in range(2):
                pb = S0 + t * 16 + 8 * u
                for ee in range(4):
                    for tt in range(2):
                        idx = u * 8 + ee * 2 + tt
                        fr = FR + (idx % 8) * 4
                        a = VADDR + 2 * ee + tt
                        off = so + u * 8192
                        rd = [f'ds_read_b64_tr_b16 {v(fr, 2)}, v{a} offset:{off}',
                              f'ds_read_b64_tr_b16 {v(fr + 2, 2)}, v{a} offset:{off + 4096}']
                        acc = Oacc(ee, tt)
                        c = '0' if (t == 0 and u == 0) else v(acc, 4)
                        mm = [f'{MFMA} {v(acc, 4)}, {v(fr, 4)}, {v(pb, 4)}, {c}']
                        if ee == 3 and tt == 1:
                            c = '0' if (t == 0 and u == 0) else v(LACC, 4)
                            mm.append(f'{MFMA} {v(LACC, 4)}, {v(ONES, 4)}, {v(pb, 4)}, {c}')
                        seq.append((rd, mm))
            AHEAD = 6
            head = [x for i in range(AHEAD) for x in seq[i][0]]
            main = []
            for i in range(16):
                main += seq[i][1]
                if i + AHEAD < 16:
                    main += seq[i + AHEAD][0]
            for x in head:
                e(x)
            if t == 0:
                for x in max_stream(7, False):
                    e(x)
                e(f'v_mov_b32 v{VT}, v{VM}')
                e(f'v_permlane32_swap_b32 v{VM}, v{VT}')
                e(f'v_max_f32 v{VM}, v{VM}, v{VT}')
                e(f'v_mov_b32 v{VT}, v{VM}')
                e(f'v_permlane16_swap_b32 v{VM}, v{VT}')
                e(f'v_max_f32 v{VM}, v{VM}, v{VT}')
                e(f'v_mul_f32 v{VMC}, s{sC}, v{VM}')
                for x in exp_stream(0):
                    e(x)
                if not CFG['interleave']:
                    for tt in range(1, 8):
                        for x in exp_stream(tt):
                            e(x)
            side = exp_stream(t + 1) if (t < 7 and CFG['interleave']) else []
            for x in merge(main, side):
                e(x)
        pending = epilogue(it)
    for x in pending:
        e(x)
    if CFG['prof']:
        e('s_waitcnt vmcnt(0)')
        e('s_barrier')
    e('s_endpgm')

    L = Prog()
    L.label('L_k1_loader')
    def stamp(reg, idx, real=False):
        if CFG['prof']:
            L.raw('  s_memrealtime s[60:61]' if real else '  s_memtime s[60:61]')
            L.raw('  s_waitcnt lgkmcnt(0)')
            L.raw(f'  v_writelane_b32 v{reg}, s60, {idx}')
    stamp(12, 0, True)
    stamp(12, 1)
    for j in range(4):
        dma_w(L, j)
    for n in range(6):
        dma_kv(L, n)
    for j in range(8):
        L.wait_tag(('w', j))
        stamp(11, j)
        L.emit('s_barrier')
        stamp(10, j)
        after_wbar(L, j)
    for n in range(32):
        L.wait_tag(('kv', n))
        stamp(11, 8 + n)
        L.emit('s_barrier')
        stamp(10, 8 + n)
        after_kvbar(L, n)
    if CFG['prof']:
        L.emit('s_barrier')
        stamp(10, 40)
        stamp(12, 2, True)
        stamp(12, 3)
        L.emit('s_lshl_b32 s50, s2, 10')
        L.emit('s_add_u32 s50, s50, 0x4000000')
        L.emit('s_add_u32 s64, s12, s50')
        L.emit('s_addc_u32 s65, s13, 0')
        L.emit('s_mov_b32 s66, 1024')
        L.emit('s_mov_b32 s67, 0x20000')
        L.emit('v_lshlrev_b32 v13, 2, v2')
        L.emit('buffer_store_dword v10, v13, s[64:67], 0 offen')
        L.emit('buffer_store_dword v11, v13, s[64:67], 0 offen offset:256')
        L.emit('buffer_store_dword v12, v13, s[64:67], 0 offen offset:512')
    L.label('L_k1_done')
    L.emit('s_endpgm')
    return P.text() + L.text()


def gen_k2():
    D = CFG['k2_depth']
    P = Prog()
    e = P.emit
    ACC = 0
    OF = 64
    AF = OF + D * 16
    TA = AF + 32
    DW = TA + 4
    VO = DW + 2
    VR = VO + 1
    VS = VR + 1
    sOs, sWo, sD = 16, 20, 24
    sWV, sM0, sT, sT2, sMK = 36, 37, 38, 39, 42

    def acc(qq, ee, t):
        return ACC + ((qq * 2 + ee) * 2 + t) * 4

    P.raw('.p2align 8')
    P.raw('.type oproj_kernel,@function')
    P.label('oproj_kernel')
    e('s_cmp_ge_u32 s2, 224')
    e('s_cbranch_scc1 L_k2_done')
    e('s_and_b32 s3, s2, 7')
    e('s_lshr_b32 s44, s2, 3')
    e('s_lshr_b32 s45, s3, 2')
    e('s_mul_i32 s46, s45, 40')
    e('s_add_u32 s46, s46, 32')
    e('s_load_dwordx2 s[4:5], s[0:1], s46')
    e('s_load_dwordx2 s[6:7], s[0:1], 80')
    e('s_load_dwordx2 s[8:9], s[0:1], 96')
    e('s_mul_i32 s47, s44, 37')
    e('s_lshr_b32 s47, s47, 8')
    e('s_mul_i32 s48, s47, 7')
    e('s_sub_u32 s48, s44, s48')
    e('s_bfe_u32 s49, s3, 0x10001')
    e('s_mul_i32 s49, s49, 7')
    e('s_add_u32 s48, s48, s49')
    e('s_and_b32 s49, s3, 1')
    e('s_lshl_b32 s49, s49, 2')
    e('s_add_u32 s47, s47, s49')
    t0 = 200
    e(f'v_lshrrev_b32 v{t0}, 6, v0')
    e(f'v_and_b32 v{t0 + 1}, 63, v0')
    e(f'v_readfirstlane_b32 s{sWV}, v{t0}')
    L_, G_, I_, R_, C_ = t0 + 1, t0 + 2, t0 + 3, t0 + 4, t0 + 5
    e(f'v_lshrrev_b32 v{G_}, 4, v{L_}')
    e(f'v_and_b32 v{I_}, 15, v{L_}')
    e(f'v_bfe_u32 v{R_}, v{L_}, 2, 2')
    e(f'v_and_b32 v{C_}, 3, v{L_}')
    e(f's_mul_i32 s{sM0}, s{sWV}, {D * 4096}')
    a_, b_, c_ = t0 + 6, t0 + 7, t0 + 8
    e(f's_lshl_b32 s50, s{sWV}, 14')
    e(f'v_lshlrev_b32 v{a_}, 4, v{L_}')
    e(f'v_add_u32 v{VO}, s50, v{a_}')
    e(f'v_lshrrev_b32 v{a_}, 3, v{L_}')
    e(f'v_bfe_u32 v{b_}, v{L_}, 4, 1')
    e(f'v_and_b32 v{c_}, 7, v{L_}')
    e(f'v_xor_b32 v{b_}, v{b_}, v{c_}')
    e(f'v_lshlrev_b32 v{b_}, 4, v{b_}')
    e(f'v_lshl_add_u32 v{a_}, v{a_}, 10, v{b_}')
    e(f's_lshl_b32 s50, s{sWV}, 19')
    e(f'v_add_u32 v{DW}, s50, v{a_}')
    e(f'v_xor_b32 v{DW + 1}, 64, v{DW}')
    e(f'v_add_u32 v{DW + 1}, {8192 - 1024}, v{DW + 1}')
    e(f'v_lshrrev_b32 v{a_}, 1, v{R_}')
    e(f'v_and_b32 v{b_}, 1, v{G_}')
    e(f'v_cmp_eq_u32_e64 s[{sMK}:{sMK + 1}], 1, v{b_}')
    e(f'v_lshl_or_b32 v{a_}, v{b_}, 2, v{a_}')
    e(f'v_xor_b32 v{a_}, v{a_}, v{C_}')
    e(f'v_lshlrev_b32 v{a_}, 4, v{a_}')
    e(f'v_and_b32 v{b_}, 1, v{C_}')
    e(f'v_lshl_or_b32 v{a_}, v{b_}, 3, v{a_}')
    e(f'v_lshl_add_u32 v{b_}, v{G_}, 3, v{R_}')
    e(f'v_lshl_add_u32 v{a_}, v{b_}, 7, v{a_}')
    e(f'v_add_u32 v{a_}, s{sM0}, v{a_}')
    for ee in range(2):
        for t in range(2):
            e(f'v_xor_b32 v{TA + 2 * ee + t}, {64 * ee + 8 * t}, v{a_}')
    e(f'v_lshlrev_b32 v{a_}, 4, v{L_}')
    e(f's_lshl_b32 s50, s{sWV}, 11')
    e(f'v_add_u32 v{VR}, s50, v{a_}')
    e(f's_lshr_b32 s50, s{sWV}, 1')
    e('s_lshl_b32 s50, s50, 15')
    e(f's_and_b32 s51, s{sWV}, 1')
    e('s_lshl_b32 s51, s51, 6')
    e('s_add_u32 s50, s50, s51')
    e(f'v_lshlrev_b32 v{a_}, 11, v{I_}')
    e(f'v_lshl_add_u32 v{a_}, v{G_}, 4, v{a_}')
    e(f'v_add_u32 v{VS}, s50, v{a_}')
    e('s_waitcnt lgkmcnt(0)')
    e('s_mul_i32 s50, s45, 56')
    e('s_lshl_b32 s51, s48, 2')
    e('s_add_u32 s50, s50, s51')
    e('s_lshl_b32 s50, s50, 17')
    e(f's_add_u32 s{sOs}, s8, s50')
    e(f's_addc_u32 s{sOs + 1}, s9, 0')
    e(f's_mov_b32 s{sOs + 2}, {4 * 131072}')
    e(f's_mov_b32 s{sOs + 3}, 0x20000')
    e('s_lshl_b32 s50, s47, 7')
    e(f's_add_u32 s{sWo}, s4, s50')
    e(f's_addc_u32 s{sWo + 1}, s5, 0')
    e(f's_sub_u32 s{sWo + 2}, 0x400000, s50')
    e(f's_mov_b32 s{sWo + 3}, 0x20000')
    e('s_lshl_b32 s50, s48, 17')
    e('s_lshl_b32 s51, s45, 10')
    e('s_add_u32 s50, s50, s51')
    e('s_lshl_b32 s51, s47, 7')
    e('s_add_u32 s50, s50, s51')
    e(f's_add_u32 s{sD}, s6, s50')
    e(f's_addc_u32 s{sD + 1}, s7, 0')
    e(f's_sub_u32 s{sD + 2}, {896 * 2048}, s50')
    e(f's_mov_b32 s{sD + 3}, 0x20000')

    def issue(kk):
        st = kk % D
        e(f's_add_u32 m0, s{sM0}, {st * 4096}')
        e(f's_mov_b32 s{sT}, {kk * 32768}')
        e(f's_mov_b32 s{sT2}, {kk * 32768 + 16384 - 2048}')
        for m in range(4):
            so = sT if m < 2 else sT2
            e(f'buffer_load_dwordx4 v{DW + (m & 1)}, s[{sWo}:{sWo + 3}], s{so} offen offset:{m * 1024} lds', tag=('wo', kk))
        for qq in range(4):
            e(f's_mov_b32 s{sT}, {qq * 131072 + (kk >> 2) * 4096}')
            e(f'buffer_load_dwordx4 {v(OF + st * 16 + qq * 4, 4)}, v{VO}, s[{sOs}:{sOs + 3}], s{sT} offen offset:{(kk & 3) * 1024}')

    def reads(kk):
        st = kk % D
        out = []
        for ee in range(2):
            for t in range(2):
                fr = AF + (kk & 1) * 16 + (ee * 2 + t) * 4
                out += [f'ds_read_b64_tr_b16 {v(fr, 2)}, v{TA + 2 * ee + t} offset:{st * 4096}',
                        f'ds_read_b64_tr_b16 {v(fr + 2, 2)}, v{TA + 2 * ee + t} offset:{st * 4096 + 512}']
        return out

    for kk in range(D):
        issue(kk)
    P.wait_tag(('wo', 0))
    for x in reads(0):
        e(x)
    for kk in range(16):
        st = kk % D
        if kk + 1 < 16:
            P.wait_tag(('wo', kk + 1))
            for x in reads(kk + 1):
                e(x)
        for ee in range(2):
            for t in range(2):
                fr = AF + (kk & 1) * 16 + (ee * 2 + t) * 4
                for qq in range(4):
                    a = acc(qq, ee, t)
                    c = '0' if kk == 0 else v(a, 4)
                    e(f'{MFMA} {v(a, 4)}, {v(fr, 4)}, {v(OF + st * 16 + qq * 4, 4)}, {c}')
        if kk + D < 16:
            issue(kk + D)
    e('s_barrier')
    e(f'v_lshlrev_b32 v{TA}, 3, v{VR}')
    e(f'v_and_b32 v{TA + 1}, 0x3ff, v{VR}')
    e(f'v_and_b32 v{TA}, 0xffffc000, v{TA}')
    e(f'v_or_b32 v{TA}, v{TA}, v{TA + 1}')
    for tl in range(16):
        e(f'ds_write_b128 v{TA}, {v(ACC + tl * 4, 4)} offset:{tl * 1024}')
    P.wait_lgkm(0)
    e('s_barrier')
    RB = 64
    e(f'v_add_u32 v{TA + 2}, 65536, v{VR}')
    for p in range(8):
        for t in range(2):
            a = VR if p < 4 else TA + 2
            e(f'ds_read_b128 {v(RB + (p * 2 + t) * 4, 4)}, v{a} offset:{(p & 3) * 16384 + t * 1024}')
    for p in range(1, 8):
        for k in range(8):
            e(f'v_add_f32 v{RB + k}, v{RB + k}, v{RB + p * 8 + k}')
    o0, o1 = RB, RB + 4
    for x in [f'v_cvt_pk_bf16_f32 v{o0}, v{o0}, v{o0 + 1}',
              f'v_cvt_pk_bf16_f32 v{o0 + 1}, v{o0 + 2}, v{o0 + 3}',
              f'v_cvt_pk_bf16_f32 v{o0 + 2}, v{o1}, v{o1 + 1}',
              f'v_cvt_pk_bf16_f32 v{o0 + 3}, v{o1 + 2}, v{o1 + 3}',
              f'v_cndmask_b32_e64 v{o1}, v{o0}, v{o0 + 2}, s[{sMK}:{sMK + 1}]',
              f'v_cndmask_b32_e64 v{o1 + 1}, v{o0 + 1}, v{o0 + 3}, s[{sMK}:{sMK + 1}]',
              f'v_cndmask_b32_e64 v{o1 + 2}, v{o0 + 2}, v{o0}, s[{sMK}:{sMK + 1}]',
              f'v_cndmask_b32_e64 v{o1 + 3}, v{o0 + 3}, v{o0 + 1}, s[{sMK}:{sMK + 1}]',
              f'buffer_store_dwordx4 {v(o1, 4)}, v{VS}, s[{sD}:{sD + 3}], 0 offen']:
        e(x)
    P.label('L_k2_done')
    e('s_endpgm')
    return P.text()


HEADER = open('cdna_kernels/' + NAME + '.s.ref').read().split('; Override launch')[0]


def desc(name):
    return f'''.p2align 6
.amdhsa_kernel {name}
  .amdhsa_next_free_vgpr 256
  .amdhsa_next_free_sgpr 102
  .amdhsa_accum_offset 256
  .amdhsa_group_segment_fixed_size 0
  .amdhsa_kernarg_size 104
  .amdhsa_user_sgpr_count 2
  .amdhsa_user_sgpr_kernarg_segment_ptr 1
  .amdhsa_system_sgpr_workgroup_id_x 1
.end_amdhsa_kernel
'''


def main():
    out = HEADER
    out += '; @launch kernel=attn_kernel grid=(256,1,1) block=(512,1,1) lds=163840\n'
    out += '; @launch kernel=oproj_kernel grid=(224,1,1) block=(512,1,1) lds=163840\n'
    out += '.amdgcn_target "amdgcn-amd-amdhsa--gfx950"\n.text\n.globl attn_kernel\n.globl oproj_kernel\n'
    out += gen_k1() + gen_k2()
    out += '.section .rodata,"a"\n' + desc('attn_kernel') + desc('oproj_kernel')
    path = sys.argv[1] if len(sys.argv) > 1 else 'cdna_kernels/' + NAME + '.s'
    open(path, 'w').write(out)
    import subprocess
    r = subprocess.run(['clang', '-x', 'assembler', '-target', 'amdgcn-amd-amdhsa', '-mcpu=gfx950', '-c', path, '-o', 'chk.o'], capture_output=True, text=True)
    print('wrote', path, len(out), 'bytes', 'ASM OK' if r.returncode == 0 else 'ASM FAIL\n' + r.stderr[:600])


main()
```

```python
import sys, os
sys.path.insert(0, os.path.dirname(__file__))
from asmlib import Prog, Ins, v, s, merge

NAME = 'concat_heads__mha_block_cached__gqa_block_cached__near_ridge'
CFG = dict(R=8, interleave=True, store_mod='', kv_mod='', k2_depth=5, prof=0)
for a in sys.argv[2:]:
    k_, v_ = a.split('=')
    CFG[k_] = type(CFG[k_])(int(v_)) if not isinstance(CFG[k_], str) else v_.replace('+', ' ')

MFMA = 'v_mfma_f32_16x16x32_bf16'
SCALE_C = 128 ** -0.5 * 1.4426950408889634
import struct
def f32hex(x):
    return '0x%08x' % struct.unpack('<I', struct.pack('<f', x))[0]

sX, sK, sV, sW, sO = 16, 20, 24, 28, 32
sWAVE, sM0B, sSOFF, sXIT, sC, sOIT, sMASK = 36, 37, 38, 39, 40, 41, 42
S0 = 0
QO = 128
FR = 192
LACC = 224
ONES = 228
KADDR = 232
VADDR = 236
DK = 244
DV = 246
DWQ = 248
VM = 250
VT = 251
VMC = 252
VOFF = 253
VLOW = 254
VT2 = 255


def Qf(it, ks):
    return QO + 8 * (4 * it + ks)


def Oacc(e, t):
    return QO + 8 * (2 * e + t) + 4


def gen_k1():
    R = CFG['R']
    kvmod = (' ' + CFG['kv_mod']) if CFG['kv_mod'] else ''
    P = Prog()
    e = P.emit
    P.raw('.p2align 8')
    P.raw('.type attn_kernel,@function')
    P.label('attn_kernel')
    e('s_cmp_ge_u32 s2, 256')
    e('s_cbranch_scc1 L_k1_done')
    e('s_and_b32 s3, s2, 7')
    e('s_lshr_b32 s44, s2, 3')
    e('s_lshr_b32 s45, s3, 2')
    e('s_mul_i32 s46, s45, 40')
    e('s_load_dwordx8 s[4:11], s[0:1], s46')
    e('s_load_dwordx2 s[12:13], s[0:1], 96')
    e('s_and_b32 s47, s3, 3')
    e('s_lshl_b32 s47, s47, 3')
    e('s_lshr_b32 s48, s44, 2')
    e('s_add_u32 s47, s47, s48')
    e('s_and_b32 s48, s44, 3')
    e('v_lshrrev_b32 v1, 6, v0')
    e('v_and_b32 v2, 63, v0')
    e(f'v_readfirstlane_b32 s{sWAVE}, v1')
    e('v_lshrrev_b32 v3, 4, v2')
    e('v_and_b32 v4, 15, v2')
    e('v_bfe_u32 v5, v2, 2, 2')
    e('v_and_b32 v6, 3, v2')
    e(f's_lshl_b32 s{sM0B}, s{sWAVE}, 11')
    e(f's_and_b32 s49, s{sWAVE}, 1')
    e('v_and_b32 v7, 1, v3')
    e('v_lshrrev_b32 v8, 1, v3')
    e('v_lshl_or_b32 v7, v8, 2, v7')
    e('s_lshl_b32 s50, s49, 3')
    e('v_or_b32 v8, s50, v7')
    e('v_xor_b32 v8, v8, v4')
    e('v_lshlrev_b32 v8, 4, v8')
    e(f's_lshl_b32 s50, s{sWAVE}, 3')
    e('v_add_u32 v9, s50, v3')
    e(f'v_lshl_add_u32 v{DWQ}, v9, 13, v8')
    e(f'v_add_u32 v{DWQ + 1}, {4 * 8192 - 1024}, v{DWQ}')
    e('v_lshlrev_b32 v9, 8, v3')
    e(f'v_add_u32 v9, s{sM0B}, v9')
    e('v_xor_b32 v8, v7, v4')
    e(f'v_lshl_add_u32 v{DV}, v8, 4, v9')
    e('v_xor_b32 v8, 8, v8')
    e(f'v_lshl_add_u32 v{DV + 1}, v8, 4, v9')
    e('s_lshl_b32 s50, s49, 2')
    e('v_xor_b32 v8, s50, v3')
    e('v_lshlrev_b32 v8, 1, v8')
    e('v_or_b32 v8, s49, v8')
    e('v_xor_b32 v8, v8, v4')
    e(f'v_lshl_add_u32 v{DK}, v8, 4, v9')
    e('v_xor_b32 v8, 8, v8')
    e(f'v_lshl_add_u32 v{DK + 1}, v8, 4, v9')
    e('s_waitcnt lgkmcnt(0)')
    e('s_lshl_b32 s50, s47, 8')
    e(f's_add_u32 s{sW}, s10, s50')
    e(f's_addc_u32 s{sW + 1}, s11, 0')
    e(f's_sub_u32 s{sW + 2}, 0x400000, s50')
    e(f's_mov_b32 s{sW + 3}, 0x20000')
    e('s_mul_i32 s50, s48, 114688')
    e(f's_add_u32 s{sX}, s4, s50')
    e(f's_addc_u32 s{sX + 1}, s5, 0')
    e(f's_mov_b32 s{sX + 2}, {5 * 114688}')
    e(f's_mov_b32 s{sX + 3}, 0x20000')
    e('s_lshl_b32 s50, s48, 5')
    e('s_add_u32 s50, s50, s47')
    e('s_lshl_b32 s50, s50, 17')
    e(f's_add_u32 s{sK}, s6, s50')
    e(f's_addc_u32 s{sK + 1}, s7, 0')
    e(f's_mov_b32 s{sK + 2}, {4 * 4194304 + 131072}')
    e(f's_mov_b32 s{sK + 3}, 0x20000')
    e(f's_add_u32 s{sV}, s8, s50')
    e(f's_addc_u32 s{sV + 1}, s9, 0')
    e(f's_mov_b32 s{sV + 2}, {4 * 4194304 + 131072}')
    e(f's_mov_b32 s{sV + 3}, 0x20000')
    e('s_lshl_b32 s50, s45, 3')
    e('s_add_u32 s50, s50, s48')
    e('s_mul_i32 s50, s50, 224')
    e('s_add_u32 s50, s50, s47')
    e('s_lshl_b32 s50, s50, 12')
    e(f's_add_u32 s{sO}, s12, s50')
    e(f's_addc_u32 s{sO + 1}, s13, 0')
    e(f's_mov_b32 s{sO + 2}, {4 * 7 * 131072 + 6 * 131072 + 4096}')
    e(f's_mov_b32 s{sO + 3}, 0x20000')
    e(f's_mov_b32 s{sXIT}, {4 * 114688}')
    e(f's_mov_b32 s{sOIT}, {4 * 7 * 131072}')
    e(f's_mov_b32 s{sC}, {f32hex(SCALE_C)}')

    def dma_w(P, j):
        slot = 6 + (j & 3)
        P.emit(f's_add_u32 m0, s{sM0B}, {slot * 16384}')
        P.emit(f's_mov_b32 s{sSOFF}, {j * 524288}')
        for m in range(2):
            P.emit(f'buffer_load_dwordx4 v{DWQ + m}, s[{sW}:{sW + 3}], s{sSOFF} offen offset:{m * 1024} lds', tag=('w', j))

    def dma_kv(P, n):
        if n >= 32:
            return
        it, isv, t = n >> 4, (n >> 3) & 1, n & 7
        slot = n % R
        P.emit(f's_add_u32 m0, s{sM0B}, {slot * 16384}')
        P.emit(f's_mov_b32 s{sSOFF}, {it * 4 * 4194304 + t * 16384}')
        srd, d = (sV, DV) if isv else (sK, DK)
        for m in range(2):
            P.emit(f'buffer_load_dwordx4 v{d + m}, s[{srd}:{srd + 3}], s{sSOFF} offen offset:{m * 1024}{kvmod} lds', tag=('kv', n))

    def after_wbar(P, j):
        if j >= 1:
            if j + 3 <= 7:
                dma_w(P, j + 3)
            else:
                n = 6 + (j - 5)
                if n < R:
                    dma_kv(P, n)

    def after_kvbar(P, n):
        if n == 0:
            if R == 10:
                dma_kv(P, 9)
        else:
            dma_kv(P, n - 1 + R)

    e(f's_cmp_eq_u32 s{sWAVE}, 7')
    e('s_cbranch_scc1 L_k1_loader')

    e(f's_lshl_b32 s50, s{sWAVE}, 4')
    e('v_add_u32 v8, s50, v4')
    e('v_lshlrev_b32 v8, 10, v8')
    e(f'v_lshl_add_u32 v{VOFF}, v3, 4, v8')
    e('v_and_b32 v8, 1, v5')
    e('v_lshrrev_b32 v9, 1, v5')
    e('v_lshl_or_b32 v8, v9, 2, v8')
    e('v_and_b32 v9, 1, v3')
    e('v_lshl_or_b32 v8, v9, 3, v8')
    e('v_xor_b32 v8, v8, v6')
    e('v_lshlrev_b32 v8, 4, v8')
    e('v_and_b32 v10, 1, v6')
    e('v_lshl_or_b32 v8, v10, 3, v8')
    e(f'v_cmp_eq_u32_e64 s[{sMASK}:{sMASK + 1}], 1, v9')
    e('v_lshl_add_u32 v10, v3, 3, v5')
    e('v_lshl_add_u32 v10, v10, 8, v8')
    e('v_add_u32 v10, 98304, v10')
    for ks in range(4):
        for t in range(2):
            e(f'v_xor_b32 v{VADDR + 2 * ks + t}, {64 * ks + 8 * t}, v10')
    e('v_lshl_add_u32 v10, v3, 2, v5')
    e(f'v_lshl_add_u32 v{VLOW}, v10, 8, v8')
    e('v_lshrrev_b32 v9, 3, v4')
    e('v_and_b32 v10, 7, v4')
    e('v_lshlrev_b32 v11, 2, v9')
    e('v_xor_b32 v10, v10, v11')
    e('v_lshl_or_b32 v10, v10, 1, v9')
    e('v_xor_b32 v10, v10, v3')
    e('v_lshlrev_b32 v10, 4, v10')
    e('v_lshl_add_u32 v10, v4, 8, v10')
    for ks in range(4):
        e(f'v_xor_b32 v{KADDR + ks}, {64 * ks}, v10')
    e(f's_lshl_b32 s50, s{sWAVE}, 17')
    e('v_lshlrev_b32 v9, 4, v2')
    e(f'v_add_u32 v{VT2}, s50, v9')
    for k in range(4):
        e(f'v_mov_b32 v{ONES + k}, 0x3f803f80')

    def xload(P, kstep, it):
        dst = (kstep * 2 + it) * 4
        so = f's{sXIT}' if it else '0'
        P.emit(f'buffer_load_dwordx4 {v(dst, 4)}, v{VOFF}, s[{sX}:{sX + 3}], {so} offen offset:{kstep * 64}')

    for j in range(4):
        dma_w(P, j)
        for kk in range(2):
            for it in range(2):
                xload(P, 2 * j + kk, it)
    for n in range(2):
        dma_kv(P, n)
    for ks in range(8, 16):
        for it in range(2):
            xload(P, ks, it)
    for n in range(2, 6):
        dma_kv(P, n)

    for j in range(8):
        P.comment(f'W step {j}')
        P.wait_tag(('w', j))
        e('s_barrier')
        after_wbar(P, j)
        slot_off = (j & 3) * 16384
        seq = []
        for kk in range(2):
            for ks in range(4):
                for t in range(2):
                    idx = (kk * 8 + ks * 2 + t)
                    fr = FR + (idx % 8) * 4
                    a = VADDR + 2 * ks + t
                    off = slot_off + kk * 8192
                    rd = [f'ds_read_b64_tr_b16 {v(fr, 2)}, v{a} offset:{off}',
                          f'ds_read_b64_tr_b16 {v(fr + 2, 2)}, v{a} offset:{off + 1024}']
                    mm = []
                    for it in range(2):
                        acc = Qf(it, ks) + 4 * t
                        xb = ((2 * j + kk) * 2 + it) * 4
                        c = '0' if (j == 0 and kk == 0) else v(acc, 4)
                        mm.append(f'{MFMA} {v(acc, 4)}, {v(fr, 4)}, {v(xb, 4)}, {c}')
                    seq.append((rd, mm))
        AHEAD = 6
        for i in range(AHEAD):
            for x in seq[i][0]:
                e(x)
        for i in range(16):
            for x in seq[i][1]:
                e(x)
            if i + AHEAD < 16:
                for x in seq[i + AHEAD][0]:
                    e(x)
    qconv = []
    for it in range(2):
        for ks in range(4):
            q0, q1 = Qf(it, ks), Qf(it, ks) + 4
            qconv += [f'v_cvt_pk_bf16_f32 v{q1}, v{q1}, v{q1 + 1}',
                      f'v_cvt_pk_bf16_f32 v{q1 + 1}, v{q1 + 2}, v{q1 + 3}',
                      f'v_cvt_pk_bf16_f32 v{q1 + 2}, v{q0}, v{q0 + 1}',
                      f'v_cvt_pk_bf16_f32 v{q1 + 3}, v{q0 + 2}, v{q0 + 3}',
                      f'v_cndmask_b32_e64 v{q0}, v{q1 + 2}, v{q1}, s[{sMASK}:{sMASK + 1}]',
                      f'v_cndmask_b32_e64 v{q0 + 1}, v{q1 + 3}, v{q1 + 1}, s[{sMASK}:{sMASK + 1}]',
                      f'v_cndmask_b32_e64 v{q0 + 2}, v{q1}, v{q1 + 2}, s[{sMASK}:{sMASK + 1}]',
                      f'v_cndmask_b32_e64 v{q0 + 3}, v{q1 + 1}, v{q1 + 3}, s[{sMASK}:{sMASK + 1}]']
    for ee in range(4):
        for t in range(2):
            qconv.append(f'v_xor_b32 v{VADDR + 2 * ee + t}, {64 * ee + 8 * t}, v{VLOW}')
    qconv.append(f'v_mov_b32 v{VOFF}, v{VT2}')

    win = {'k': 0, 'v': 0}

    def set_window(which, slot):
        w = slot >> 2
        out = []
        if w != win[which]:
            d = (w - win[which]) * 65536
            regs = range(KADDR, KADDR + 4) if which == 'k' else range(VADDR, VADDR + 8)
            for r_ in regs:
                if d > 0:
                    out.append(f'v_add_u32 v{r_}, {d}, v{r_}')
                else:
                    out.append(f'v_subrev_u32 v{r_}, {-d}, v{r_}')
            win[which] = w
        return out

    def max_stream(t, first):
        b = S0 + t * 16
        out = []
        vals = list(range(b, b + 16))
        if first:
            out.append(f'v_max3_f32 v{VM}, v{vals[0]}, v{vals[1]}, v{vals[2]}')
            out.append(f'v_max_f32 v{VM}, v{VM}, v{vals[3]}')
            vals = vals[4:]
        for k in range(0, len(vals), 2):
            out.append(f'v_max3_f32 v{VM}, v{VM}, v{vals[k]}, v{vals[k + 1]}')
        return out

    def exp_stream(t):
        b = S0 + t * 16
        out = []
        for u in range(2):
            bb = b + 8 * u
            for k in range(8):
                out.append(f'v_fma_f32 v{bb + k}, v{bb + k}, s{sC}, -v{VMC}')
            for k in range(8):
                out.append(f'v_exp_f32 v{bb + k}, v{bb + k}')
            for k in range(4):
                out.append(f'v_cvt_pk_bf16_f32 v{bb + k}, v{bb + 2 * k}, v{bb + 2 * k + 1}')
        return out

    def epilogue(it):
        out = [f'v_rcp_f32 v{VT}, v{LACC}']
        so = f's{sOIT}' if it else '0'
        smod = (' ' + CFG['store_mod']) if CFG['store_mod'] else ''
        for ee in range(4):
            o0, o1 = Oacc(ee, 0), Oacc(ee, 1)
            for k in range(4):
                out.append(f'v_mul_f32 v{o0 + k}, v{o0 + k}, v{VT}')
            for k in range(4):
                out.append(f'v_mul_f32 v{o1 + k}, v{o1 + k}, v{VT}')
            out += [f'v_cvt_pk_bf16_f32 v{o0}, v{o0}, v{o0 + 1}',
                    f'v_cvt_pk_bf16_f32 v{o0 + 1}, v{o0 + 2}, v{o0 + 3}',
                    f'v_cvt_pk_bf16_f32 v{o0 + 2}, v{o1}, v{o1 + 1}',
                    f'v_cvt_pk_bf16_f32 v{o0 + 3}, v{o1 + 2}, v{o1 + 3}',
                    f'v_cndmask_b32_e64 v{o1}, v{o0}, v{o0 + 2}, s[{sMASK}:{sMASK + 1}]',
                    f'v_cndmask_b32_e64 v{o1 + 1}, v{o0 + 1}, v{o0 + 3}, s[{sMASK}:{sMASK + 1}]',
                    f'v_cndmask_b32_e64 v{o1 + 2}, v{o0 + 2}, v{o0}, s[{sMASK}:{sMASK + 1}]',
                    f'v_cndmask_b32_e64 v{o1 + 3}, v{o0 + 3}, v{o0 + 1}, s[{sMASK}:{sMASK + 1}]',
                    f'buffer_store_dwordx4 {v(o1, 4)}, v{VOFF}, s[{sO}:{sO + 3}], {so} offen offset:{ee * 1024}{smod}']
        return out

    pending = qconv
    for it in range(2):
        for t in range(8):
            n = it * 16 + t
            slot = n % R
            P.wait_tag(('kv', n))
            e('s_barrier')
            after_kvbar(P, n)
            for x in pending:
                e(x)
            pending = []
            for x in set_window('k', slot):
                e(x)
            so = (slot & 3) * 16384
            rd, mm = [], []
            for kt in range(4):
                for ks in range(4):
                    idx = kt * 4 + ks
                    fr = FR + (idx % 8) * 4
                    rd.append(f'ds_read_b128 {v(fr, 4)}, v{KADDR + ks} offset:{so + kt * 4096}')
                    acc = S0 + t * 16 + kt * 4
                    c = '0' if ks == 0 else v(acc, 4)
                    mm.append(f'{MFMA} {v(acc, 4)}, {v(fr, 4)}, {v(Qf(it, ks), 4)}, {c}')
            main = rd[:8]
            for i in range(16):
                main.append(mm[i])
                if i + 8 < 16:
                    main.append(rd[i + 8])
            side = max_stream(t - 1, t == 1) if t >= 1 else []
            for x in (rd[:8] + merge(main[8:], side)):
                e(x)
        for t in range(8):
            n = it * 16 + 8 + t
            slot = n % R
            P.wait_tag(('kv', n))
            e('s_barrier')
            after_kvbar(P, n)
            for x in set_window('v', slot):
                e(x)
            so = (slot & 3) * 16384
            seq = []
            for u in range(2):
                pb = S0 + t * 16 + 8 * u
                for ee in range(4):
                    for tt in range(2):
                        idx = u * 8 + ee * 2 + tt
                        fr = FR + (idx % 8) * 4
                        a = VADDR + 2 * ee + tt
                        off = so + u * 8192
                        rd = [f'ds_read_b64_tr_b16 {v(fr, 2)}, v{a} offset:{off}',
                              f'ds_read_b64_tr_b16 {v(fr + 2, 2)}, v{a} offset:{off + 4096}']
                        acc = Oacc(ee, tt)
                        c = '0' if (t == 0 and u == 0) else v(acc, 4)
                        mm = [f'{MFMA} {v(acc, 4)}, {v(fr, 4)}, {v(pb, 4)}, {c}']
                        if ee == 3 and tt == 1:
                            c = '0' if (t == 0 and u == 0) else v(LACC, 4)
                            mm.append(f'{MFMA} {v(LACC, 4)}, {v(ONES, 4)}, {v(pb, 4)}, {c}')
                        seq.append((rd, mm))
            AHEAD = 6
            head = [x for i in range(AHEAD) for x in seq[i][0]]
            main = []
            for i in range(16):
                main += seq[i][1]
                if i + AHEAD < 16:
                    main += seq[i + AHEAD][0]
            for x in head:
                e(x)
            if t == 0:
                for x in max_stream(7, False):
                    e(x)
                e(f'v_mov_b32 v{VT}, v{VM}')
                e(f'v_permlane32_swap_b32 v{VM}, v{VT}')
                e(f'v_max_f32 v{VM}, v{VM}, v{VT}')
                e(f'v_mov_b32 v{VT}, v{VM}')
                e(f'v_permlane16_swap_b32 v{VM}, v{VT}')
                e(f'v_max_f32 v{VM}, v{VM}, v{VT}')
                e(f'v_mul_f32 v{VMC}, s{sC}, v{VM}')
                for x in exp_stream(0):
                    e(x)
                if not CFG['interleave']:
                    for tt in range(1, 8):
                        for x in exp_stream(tt):
                            e(x)
            side = exp_stream(t + 1) if (t < 7 and CFG['interleave']) else []
            for x in merge(main, side):
                e(x)
        pending = epilogue(it)
    for x in pending:
        e(x)
    if CFG['prof']:
        e('s_waitcnt vmcnt(0)')
        e('s_barrier')
    e('s_endpgm')

    L = Prog()
    L.label('L_k1_loader')
    def stamp(reg, idx, real=False):
        if CFG['prof']:
            L.raw('  s_memrealtime s[60:61]' if real else '  s_memtime s[60:61]')
            L.raw('  s_waitcnt lgkmcnt(0)')
            L.raw(f'  v_writelane_b32 v{reg}, s60, {idx}')
    stamp(12, 0, True)
    stamp(12, 1)
    for j in range(4):
        dma_w(L, j)
    for n in range(6):
        dma_kv(L, n)
    for j in range(8):
        L.wait_tag(('w', j))
        stamp(11, j)
        L.emit('s_barrier')
        stamp(10, j)
        after_wbar(L, j)
    for n in range(32):
        L.wait_tag(('kv', n))
        stamp(11, 8 + n)
        L.emit('s_barrier')
        stamp(10, 8 + n)
        after_kvbar(L, n)
    if CFG['prof']:
        L.emit('s_barrier')
        stamp(10, 40)
        stamp(12, 2, True)
        stamp(12, 3)
        L.emit('s_lshl_b32 s50, s2, 10')
        L.emit('s_add_u32 s50, s50, 0x4000000')
        L.emit('s_add_u32 s64, s12, s50')
        L.emit('s_addc_u32 s65, s13, 0')
        L.emit('s_mov_b32 s66, 1024')
        L.emit('s_mov_b32 s67, 0x20000')
        L.emit('v_lshlrev_b32 v13, 2, v2')
        L.emit('buffer_store_dword v10, v13, s[64:67], 0 offen')
        L.emit('buffer_store_dword v11, v13, s[64:67], 0 offen offset:256')
        L.emit('buffer_store_dword v12, v13, s[64:67], 0 offen offset:512')
    if CFG['prof'] == 2:
        L.emit('s_load_dwordx2 s[64:65], s[0:1], 88')
        L.emit('s_mov_b32 s66, 256')
        L.raw('  s_waitcnt lgkmcnt(0)')
        L.raw('  v_readlane_b32 s60, v12, 0')
        L.raw('  v_readlane_b32 s61, v12, 2')
        L.raw('  v_readlane_b32 s62, v12, 1')
        L.raw('  s_nop 4')
        L.raw('  s_not_b32 s60, s60')
        L.raw('  v_mov_b32 v14, s60')
        L.raw('  v_mov_b32 v15, s61')
        L.raw('  v_mov_b32 v16, 0')
        L.raw('  s_mov_b64 exec, 1')
        L.raw('  buffer_atomic_umax v14, v16, s[64:67], 0 offen')
        L.raw('  buffer_atomic_umax v15, v16, s[64:67], 0 offen offset:4')
        L.raw('  s_mov_b64 exec, -1')
        L.raw('  s_cmp_lg_u32 s2, 0')
        L.raw('  s_cbranch_scc1 L_k1_done')
        L.raw('  v_subrev_u32 v10, s62, v10')
        L.raw('  v_and_b32 v14, 3, v2')
        L.raw('  v_cmp_eq_u32 vcc, 0, v14')
        L.raw('  v_cmp_gt_u32 s[60:61], 44, v2')
        L.raw('  s_and_b64 exec, vcc, s[60:61]')
        L.raw('  buffer_store_dword v10, v2, s[64:67], 0 offen offset:16')
    L.label('L_k1_done')
    L.emit('s_endpgm')
    return P.text() + L.text()


def gen_k2():
    D = CFG['k2_depth']
    P = Prog()
    e = P.emit
    ACC = 0
    OF = 64
    AF = OF + D * 16
    TA = AF + 32
    DW = TA + 4
    VO = DW + 2
    VR = VO + 1
    VS = VR + 1
    sOs, sWo, sD = 16, 20, 24
    sWV, sM0, sT, sT2, sMK = 36, 37, 38, 39, 42

    def acc(qq, ee, t):
        return ACC + ((qq * 2 + ee) * 2 + t) * 4

    P.raw('.p2align 8')
    P.raw('.type oproj_kernel,@function')
    P.label('oproj_kernel')
    e('s_cmp_ge_u32 s2, 224')
    e('s_cbranch_scc1 L_k2_done')
    if CFG['prof'] == 2:
        P.raw('  s_memrealtime s[70:71]')
        P.raw('  s_load_dwordx2 s[64:65], s[0:1], 88')
    e('s_and_b32 s3, s2, 7')
    e('s_lshr_b32 s44, s2, 3')
    e('s_lshr_b32 s45, s3, 2')
    e('s_mul_i32 s46, s45, 40')
    e('s_add_u32 s46, s46, 32')
    e('s_load_dwordx2 s[4:5], s[0:1], s46')
    e('s_load_dwordx2 s[6:7], s[0:1], 80')
    e('s_load_dwordx2 s[8:9], s[0:1], 96')
    e('s_mul_i32 s47, s44, 37')
    e('s_lshr_b32 s47, s47, 8')
    e('s_mul_i32 s48, s47, 7')
    e('s_sub_u32 s48, s44, s48')
    e('s_bfe_u32 s49, s3, 0x10001')
    e('s_mul_i32 s49, s49, 7')
    e('s_add_u32 s48, s48, s49')
    e('s_and_b32 s49, s3, 1')
    e('s_lshl_b32 s49, s49, 2')
    e('s_add_u32 s47, s47, s49')
    t0 = 200
    e(f'v_lshrrev_b32 v{t0}, 6, v0')
    e(f'v_and_b32 v{t0 + 1}, 63, v0')
    e(f'v_readfirstlane_b32 s{sWV}, v{t0}')
    L_, G_, I_, R_, C_ = t0 + 1, t0 + 2, t0 + 3, t0 + 4, t0 + 5
    e(f'v_lshrrev_b32 v{G_}, 4, v{L_}')
    e(f'v_and_b32 v{I_}, 15, v{L_}')
    e(f'v_bfe_u32 v{R_}, v{L_}, 2, 2')
    e(f'v_and_b32 v{C_}, 3, v{L_}')
    e(f's_mul_i32 s{sM0}, s{sWV}, {D * 4096}')
    a_, b_, c_ = t0 + 6, t0 + 7, t0 + 8
    e(f's_lshl_b32 s50, s{sWV}, 14')
    e(f'v_lshlrev_b32 v{a_}, 4, v{L_}')
    e(f'v_add_u32 v{VO}, s50, v{a_}')
    e(f'v_lshrrev_b32 v{a_}, 3, v{L_}')
    e(f'v_bfe_u32 v{b_}, v{L_}, 4, 1')
    e(f'v_and_b32 v{c_}, 7, v{L_}')
    e(f'v_xor_b32 v{b_}, v{b_}, v{c_}')
    e(f'v_lshlrev_b32 v{b_}, 4, v{b_}')
    e(f'v_lshl_add_u32 v{a_}, v{a_}, 10, v{b_}')
    e(f's_lshl_b32 s50, s{sWV}, 19')
    e(f'v_add_u32 v{DW}, s50, v{a_}')
    e(f'v_xor_b32 v{DW + 1}, 64, v{DW}')
    e(f'v_add_u32 v{DW + 1}, {8192 - 1024}, v{DW + 1}')
    e(f'v_lshrrev_b32 v{a_}, 1, v{R_}')
    e(f'v_and_b32 v{b_}, 1, v{G_}')
    e(f'v_cmp_eq_u32_e64 s[{sMK}:{sMK + 1}], 1, v{b_}')
    e(f'v_lshl_or_b32 v{a_}, v{b_}, 2, v{a_}')
    e(f'v_xor_b32 v{a_}, v{a_}, v{C_}')
    e(f'v_lshlrev_b32 v{a_}, 4, v{a_}')
    e(f'v_and_b32 v{b_}, 1, v{C_}')
    e(f'v_lshl_or_b32 v{a_}, v{b_}, 3, v{a_}')
    e(f'v_lshl_add_u32 v{b_}, v{G_}, 3, v{R_}')
    e(f'v_lshl_add_u32 v{a_}, v{b_}, 7, v{a_}')
    e(f'v_add_u32 v{a_}, s{sM0}, v{a_}')
    for ee in range(2):
        for t in range(2):
            e(f'v_xor_b32 v{TA + 2 * ee + t}, {64 * ee + 8 * t}, v{a_}')
    e(f'v_lshlrev_b32 v{a_}, 4, v{L_}')
    e(f's_lshl_b32 s50, s{sWV}, 11')
    e(f'v_add_u32 v{VR}, s50, v{a_}')
    e(f's_lshr_b32 s50, s{sWV}, 1')
    e('s_lshl_b32 s50, s50, 15')
    e(f's_and_b32 s51, s{sWV}, 1')
    e('s_lshl_b32 s51, s51, 6')
    e('s_add_u32 s50, s50, s51')
    e(f'v_lshlrev_b32 v{a_}, 11, v{I_}')
    e(f'v_lshl_add_u32 v{a_}, v{G_}, 4, v{a_}')
    e(f'v_add_u32 v{VS}, s50, v{a_}')
    e('s_waitcnt lgkmcnt(0)')
    e('s_mul_i32 s50, s45, 56')
    e('s_lshl_b32 s51, s48, 2')
    e('s_add_u32 s50, s50, s51')
    e('s_lshl_b32 s50, s50, 17')
    e(f's_add_u32 s{sOs}, s8, s50')
    e(f's_addc_u32 s{sOs + 1}, s9, 0')
    e(f's_mov_b32 s{sOs + 2}, {4 * 131072}')
    e(f's_mov_b32 s{sOs + 3}, 0x20000')
    e('s_lshl_b32 s50, s47, 7')
    e(f's_add_u32 s{sWo}, s4, s50')
    e(f's_addc_u32 s{sWo + 1}, s5, 0')
    e(f's_sub_u32 s{sWo + 2}, 0x400000, s50')
    e(f's_mov_b32 s{sWo + 3}, 0x20000')
    e('s_lshl_b32 s50, s48, 17')
    e('s_lshl_b32 s51, s45, 10')
    e('s_add_u32 s50, s50, s51')
    e('s_lshl_b32 s51, s47, 7')
    e('s_add_u32 s50, s50, s51')
    e(f's_add_u32 s{sD}, s6, s50')
    e(f's_addc_u32 s{sD + 1}, s7, 0')
    e(f's_sub_u32 s{sD + 2}, {896 * 2048}, s50')
    e(f's_mov_b32 s{sD + 3}, 0x20000')

    def issue(kk):
        st = kk % D
        e(f's_add_u32 m0, s{sM0}, {st * 4096}')
        e(f's_mov_b32 s{sT}, {kk * 32768}')
        e(f's_mov_b32 s{sT2}, {kk * 32768 + 16384 - 2048}')
        for m in range(4):
            so = sT if m < 2 else sT2
            e(f'buffer_load_dwordx4 v{DW + (m & 1)}, s[{sWo}:{sWo + 3}], s{so} offen offset:{m * 1024} lds', tag=('wo', kk))
        for qq in range(4):
            e(f's_mov_b32 s{sT}, {qq * 131072 + (kk >> 2) * 4096}')
            e(f'buffer_load_dwordx4 {v(OF + st * 16 + qq * 4, 4)}, v{VO}, s[{sOs}:{sOs + 3}], s{sT} offen offset:{(kk & 3) * 1024}')

    def reads(kk):
        st = kk % D
        out = []
        for ee in range(2):
            for t in range(2):
                fr = AF + (kk & 1) * 16 + (ee * 2 + t) * 4
                out += [f'ds_read_b64_tr_b16 {v(fr, 2)}, v{TA + 2 * ee + t} offset:{st * 4096}',
                        f'ds_read_b64_tr_b16 {v(fr + 2, 2)}, v{TA + 2 * ee + t} offset:{st * 4096 + 512}']
        return out

    for kk in range(D):
        issue(kk)
    P.wait_tag(('wo', 0))
    for x in reads(0):
        e(x)
    for kk in range(16):
        st = kk % D
        if kk + 1 < 16:
            P.wait_tag(('wo', kk + 1))
            for x in reads(kk + 1):
                e(x)
        for ee in range(2):
            for t in range(2):
                fr = AF + (kk & 1) * 16 + (ee * 2 + t) * 4
                for qq in range(4):
                    a = acc(qq, ee, t)
                    c = '0' if kk == 0 else v(a, 4)
                    e(f'{MFMA} {v(a, 4)}, {v(fr, 4)}, {v(OF + st * 16 + qq * 4, 4)}, {c}')
        if kk + D < 16:
            issue(kk + D)
    e('s_barrier')
    e(f'v_lshlrev_b32 v{TA}, 3, v{VR}')
    e(f'v_and_b32 v{TA + 1}, 0x3ff, v{VR}')
    e(f'v_and_b32 v{TA}, 0xffffc000, v{TA}')
    e(f'v_or_b32 v{TA}, v{TA}, v{TA + 1}')
    for tl in range(16):
        e(f'ds_write_b128 v{TA}, {v(ACC + tl * 4, 4)} offset:{tl * 1024}')
    P.wait_lgkm(0)
    e('s_barrier')
    RB = 64
    e(f'v_add_u32 v{TA + 2}, 65536, v{VR}')
    for p in range(8):
        for t in range(2):
            a = VR if p < 4 else TA + 2
            e(f'ds_read_b128 {v(RB + (p * 2 + t) * 4, 4)}, v{a} offset:{(p & 3) * 16384 + t * 1024}')
    for p in range(1, 8):
        for k in range(8):
            e(f'v_add_f32 v{RB + k}, v{RB + k}, v{RB + p * 8 + k}')
    o0, o1 = RB, RB + 4
    for x in [f'v_cvt_pk_bf16_f32 v{o0}, v{o0}, v{o0 + 1}',
              f'v_cvt_pk_bf16_f32 v{o0 + 1}, v{o0 + 2}, v{o0 + 3}',
              f'v_cvt_pk_bf16_f32 v{o0 + 2}, v{o1}, v{o1 + 1}',
              f'v_cvt_pk_bf16_f32 v{o0 + 3}, v{o1 + 2}, v{o1 + 3}',
              f'v_cndmask_b32_e64 v{o1}, v{o0}, v{o0 + 2}, s[{sMK}:{sMK + 1}]',
              f'v_cndmask_b32_e64 v{o1 + 1}, v{o0 + 1}, v{o0 + 3}, s[{sMK}:{sMK + 1}]',
              f'v_cndmask_b32_e64 v{o1 + 2}, v{o0 + 2}, v{o0}, s[{sMK}:{sMK + 1}]',
              f'v_cndmask_b32_e64 v{o1 + 3}, v{o0 + 3}, v{o0 + 1}, s[{sMK}:{sMK + 1}]',
              f'buffer_store_dwordx4 {v(o1, 4)}, v{VS}, s[{sD}:{sD + 3}], 0 offen']:
        e(x)
    if CFG['prof'] == 2:
        P.raw('  s_waitcnt vmcnt(0)')
        P.raw('  s_memrealtime s[72:73]')
        P.raw('  s_waitcnt lgkmcnt(0)')
        P.raw('  s_sub_u32 s64, s64, 512')
        P.raw('  s_subb_u32 s65, s65, 0')
        P.raw('  s_mov_b32 s66, 256')
        P.raw('  s_mov_b32 s67, 0x20000')
        P.raw('  s_not_b32 s70, s70')
        P.raw('  v_mov_b32 v14, s70')
        P.raw('  v_mov_b32 v15, s72')
        P.raw('  v_mov_b32 v16, 0')
        P.raw('  s_mov_b64 exec, 1')
        P.raw('  buffer_atomic_umax v14, v16, s[64:67], 0 offen offset:8')
        P.raw('  buffer_atomic_umax v15, v16, s[64:67], 0 offen offset:12')
    P.label('L_k2_done')
    e('s_endpgm')
    return P.text()


HEADER = open('cdna_kernels/' + NAME + '.s.ref').read().split('; Override launch')[0]


def desc(name):
    return f'''.p2align 6
.amdhsa_kernel {name}
  .amdhsa_next_free_vgpr 256
  .amdhsa_next_free_sgpr 102
  .amdhsa_accum_offset 256
  .amdhsa_group_segment_fixed_size 0
  .amdhsa_kernarg_size 104
  .amdhsa_user_sgpr_count 2
  .amdhsa_user_sgpr_kernarg_segment_ptr 1
  .amdhsa_system_sgpr_workgroup_id_x 1
.end_amdhsa_kernel
'''


def main():
    out = HEADER
    out += '; @launch kernel=attn_kernel grid=(256,1,1) block=(512,1,1) lds=163840\n'
    out += '; @launch kernel=oproj_kernel grid=(224,1,1) block=(512,1,1) lds=163840\n'
    out += '.amdgcn_target "amdgcn-amd-amdhsa--gfx950"\n.text\n.globl attn_kernel\n.globl oproj_kernel\n'
    out += gen_k1() + gen_k2()
    out += '.section .rodata,"a"\n' + desc('attn_kernel') + desc('oproj_kernel')
    path = sys.argv[1] if len(sys.argv) > 1 else 'cdna_kernels/' + NAME + '.s'
    open(path, 'w').write(out)
    import subprocess
    r = subprocess.run(['clang', '-x', 'assembler', '-target', 'amdgcn-amd-amdhsa', '-mcpu=gfx950', '-c', path, '-o', 'chk.o'], capture_output=True, text=True)
    print('wrote', path, len(out), 'bytes', 'ASM OK' if r.returncode == 0 else 'ASM FAIL\n' + r.stderr[:600])


main()
```

```python
import sys, os
sys.path.insert(0, os.path.dirname(__file__))
from asmlib import Prog, Ins, v, s, merge

NAME = 'concat_heads__mha_block_cached__gqa_block_cached__near_ridge'
CFG = dict(R=8, interleave=True, store_mod='', kv_mod='', k2_depth=5, prof=0)
for a in sys.argv[2:]:
    k_, v_ = a.split('=')
    CFG[k_] = type(CFG[k_])(int(v_)) if not isinstance(CFG[k_], str) else v_.replace('+', ' ')

MFMA = 'v_mfma_f32_16x16x32_bf16'
SCALE_C = 128 ** -0.5 * 1.4426950408889634
import struct
def f32hex(x):
    return '0x%08x' % struct.unpack('<I', struct.pack('<f', x))[0]

sX, sK, sV, sW, sO = 16, 20, 24, 28, 32
sWAVE, sM0B, sSOFF, sXIT, sC, sOIT, sMASK = 36, 37, 38, 39, 40, 41, 42
S0 = 0
QO = 128
FR = 192
LACC = 224
ONES = 228
KADDR = 232
VADDR = 236
DK = 244
DV = 246
DWQ = 248
VM = 250
VT = 251
VMC = 252
VOFF = 253
VLOW = 254
VT2 = 255


def Qf(it, ks):
    return QO + 8 * (4 * it + ks)


def Oacc(e, t):
    return QO + 8 * (2 * e + t) + 4


def gen_k1():
    R = CFG['R']
    kvmod = (' ' + CFG['kv_mod']) if CFG['kv_mod'] else ''
    P = Prog()
    e = P.emit
    P.raw('.p2align 8')
    P.raw('.type attn_kernel,@function')
    P.label('attn_kernel')
    e('s_cmp_ge_u32 s2, 256')
    e('s_cbranch_scc1 L_k1_done')
    e('s_and_b32 s3, s2, 7')
    e('s_lshr_b32 s44, s2, 3')
    e('s_lshr_b32 s45, s3, 2')
    e('s_mul_i32 s46, s45, 40')
    e('s_load_dwordx8 s[4:11], s[0:1], s46')
    e('s_load_dwordx2 s[12:13], s[0:1], 96')
    e('s_and_b32 s47, s3, 3')
    e('s_lshl_b32 s47, s47, 3')
    e('s_lshr_b32 s48, s44, 2')
    e('s_add_u32 s47, s47, s48')
    e('s_and_b32 s48, s44, 3')
    e('v_lshrrev_b32 v1, 6, v0')
    e('v_and_b32 v2, 63, v0')
    e(f'v_readfirstlane_b32 s{sWAVE}, v1')
    e('v_lshrrev_b32 v3, 4, v2')
    e('v_and_b32 v4, 15, v2')
    e('v_bfe_u32 v5, v2, 2, 2')
    e('v_and_b32 v6, 3, v2')
    e(f's_lshl_b32 s{sM0B}, s{sWAVE}, 11')
    e(f's_and_b32 s49, s{sWAVE}, 1')
    e('v_and_b32 v7, 1, v3')
    e('v_lshrrev_b32 v8, 1, v3')
    e('v_lshl_or_b32 v7, v8, 2, v7')
    e('s_lshl_b32 s50, s49, 3')
    e('v_or_b32 v8, s50, v7')
    e('v_xor_b32 v8, v8, v4')
    e('v_lshlrev_b32 v8, 4, v8')
    e(f's_lshl_b32 s50, s{sWAVE}, 3')
    e('v_add_u32 v9, s50, v3')
    e(f'v_lshl_add_u32 v{DWQ}, v9, 13, v8')
    e(f'v_add_u32 v{DWQ + 1}, {4 * 8192 - 1024}, v{DWQ}')
    e('v_lshlrev_b32 v9, 8, v3')
    e(f'v_add_u32 v9, s{sM0B}, v9')
    e('v_xor_b32 v8, v7, v4')
    e(f'v_lshl_add_u32 v{DV}, v8, 4, v9')
    e('v_xor_b32 v8, 8, v8')
    e(f'v_lshl_add_u32 v{DV + 1}, v8, 4, v9')
    e('s_lshl_b32 s50, s49, 2')
    e('v_xor_b32 v8, s50, v3')
    e('v_lshlrev_b32 v8, 1, v8')
    e('v_or_b32 v8, s49, v8')
    e('v_xor_b32 v8, v8, v4')
    e(f'v_lshl_add_u32 v{DK}, v8, 4, v9')
    e('v_xor_b32 v8, 8, v8')
    e(f'v_lshl_add_u32 v{DK + 1}, v8, 4, v9')
    e('s_waitcnt lgkmcnt(0)')
    e('s_lshl_b32 s50, s47, 8')
    e(f's_add_u32 s{sW}, s10, s50')
    e(f's_addc_u32 s{sW + 1}, s11, 0')
    e(f's_sub_u32 s{sW + 2}, 0x400000, s50')
    e(f's_mov_b32 s{sW + 3}, 0x20000')
    e('s_mul_i32 s50, s48, 114688')
    e(f's_add_u32 s{sX}, s4, s50')
    e(f's_addc_u32 s{sX + 1}, s5, 0')
    e(f's_mov_b32 s{sX + 2}, {5 * 114688}')
    e(f's_mov_b32 s{sX + 3}, 0x20000')
    e('s_lshl_b32 s50, s48, 5')
    e('s_add_u32 s50, s50, s47')
    e('s_lshl_b32 s50, s50, 17')
    e(f's_add_u32 s{sK}, s6, s50')
    e(f's_addc_u32 s{sK + 1}, s7, 0')
    e(f's_mov_b32 s{sK + 2}, {4 * 4194304 + 131072}')
    e(f's_mov_b32 s{sK + 3}, 0x20000')
    e(f's_add_u32 s{sV}, s8, s50')
    e(f's_addc_u32 s{sV + 1}, s9, 0')
    e(f's_mov_b32 s{sV + 2}, {4 * 4194304 + 131072}')
    e(f's_mov_b32 s{sV + 3}, 0x20000')
    e('s_lshl_b32 s50, s45, 3')
    e('s_add_u32 s50, s50, s48')
    e('s_mul_i32 s50, s50, 224')
    e('s_add_u32 s50, s50, s47')
    e('s_lshl_b32 s50, s50, 12')
    e(f's_add_u32 s{sO}, s12, s50')
    e(f's_addc_u32 s{sO + 1}, s13, 0')
    e(f's_mov_b32 s{sO + 2}, {4 * 7 * 131072 + 6 * 131072 + 4096}')
    e(f's_mov_b32 s{sO + 3}, 0x20000')
    e(f's_mov_b32 s{sXIT}, {4 * 114688}')
    e(f's_mov_b32 s{sOIT}, {4 * 7 * 131072}')
    e(f's_mov_b32 s{sC}, {f32hex(SCALE_C)}')

    def dma_w(P, j):
        slot = 6 + (j & 3)
        P.emit(f's_add_u32 m0, s{sM0B}, {slot * 16384}')
        P.emit(f's_mov_b32 s{sSOFF}, {j * 524288}')
        for m in range(2):
            P.emit(f'buffer_load_dwordx4 v{DWQ + m}, s[{sW}:{sW + 3}], s{sSOFF} offen offset:{m * 1024} lds', tag=('w', j))

    def dma_kv(P, n):
        if n >= 32:
            return
        it, isv, t = n >> 4, (n >> 3) & 1, n & 7
        slot = n % R
        P.emit(f's_add_u32 m0, s{sM0B}, {slot * 16384}')
        P.emit(f's_mov_b32 s{sSOFF}, {it * 4 * 4194304 + t * 16384}')
        srd, d = (sV, DV) if isv else (sK, DK)
        for m in range(2):
            P.emit(f'buffer_load_dwordx4 v{d + m}, s[{srd}:{srd + 3}], s{sSOFF} offen offset:{m * 1024}{kvmod} lds', tag=('kv', n))

    def after_wbar(P, j):
        if j >= 1:
            if j + 3 <= 7:
                dma_w(P, j + 3)
            else:
                n = 6 + (j - 5)
                if n < R:
                    dma_kv(P, n)

    def after_kvbar(P, n):
        if n == 0:
            if R == 10:
                dma_kv(P, 9)
        else:
            dma_kv(P, n - 1 + R)

    e(f's_cmp_eq_u32 s{sWAVE}, 7')
    e('s_cbranch_scc1 L_k1_loader')

    e(f's_lshl_b32 s50, s{sWAVE}, 4')
    e('v_add_u32 v8, s50, v4')
    e('v_lshlrev_b32 v8, 10, v8')
    e(f'v_lshl_add_u32 v{VOFF}, v3, 4, v8')
    e('v_and_b32 v8, 1, v5')
    e('v_lshrrev_b32 v9, 1, v5')
    e('v_lshl_or_b32 v8, v9, 2, v8')
    e('v_and_b32 v9, 1, v3')
    e('v_lshl_or_b32 v8, v9, 3, v8')
    e('v_xor_b32 v8, v8, v6')
    e('v_lshlrev_b32 v8, 4, v8')
    e('v_and_b32 v10, 1, v6')
    e('v_lshl_or_b32 v8, v10, 3, v8')
    e(f'v_cmp_eq_u32_e64 s[{sMASK}:{sMASK + 1}], 1, v9')
    e('v_lshl_add_u32 v10, v3, 3, v5')
    e('v_lshl_add_u32 v10, v10, 8, v8')
    e('v_add_u32 v10, 98304, v10')
    for ks in range(4):
        for t in range(2):
            e(f'v_xor_b32 v{VADDR + 2 * ks + t}, {64 * ks + 8 * t}, v10')
    e('v_lshl_add_u32 v10, v3, 2, v5')
    e(f'v_lshl_add_u32 v{VLOW}, v10, 8, v8')
    e('v_lshrrev_b32 v9, 3, v4')
    e('v_and_b32 v10, 7, v4')
    e('v_lshlrev_b32 v11, 2, v9')
    e('v_xor_b32 v10, v10, v11')
    e('v_lshl_or_b32 v10, v10, 1, v9')
    e('v_xor_b32 v10, v10, v3')
    e('v_lshlrev_b32 v10, 4, v10')
    e('v_lshl_add_u32 v10, v4, 8, v10')
    for ks in range(4):
        e(f'v_xor_b32 v{KADDR + ks}, {64 * ks}, v10')
    e(f's_lshl_b32 s50, s{sWAVE}, 17')
    e('v_lshlrev_b32 v9, 4, v2')
    e(f'v_add_u32 v{VT2}, s50, v9')
    for k in range(4):
        e(f'v_mov_b32 v{ONES + k}, 0x3f803f80')

    def xload(P, kstep, it):
        dst = (kstep * 2 + it) * 4
        so = f's{sXIT}' if it else '0'
        P.emit(f'buffer_load_dwordx4 {v(dst, 4)}, v{VOFF}, s[{sX}:{sX + 3}], {so} offen offset:{kstep * 64}')

    for j in range(4):
        dma_w(P, j)
        for kk in range(2):
            for it in range(2):
                xload(P, 2 * j + kk, it)
    for n in range(2):
        dma_kv(P, n)
    for ks in range(8, 16):
        for it in range(2):
            xload(P, ks, it)
    for n in range(2, 6):
        dma_kv(P, n)

    for j in range(8):
        P.comment(f'W step {j}')
        P.wait_tag(('w', j))
        e('s_barrier')
        after_wbar(P, j)
        slot_off = (j & 3) * 16384
        seq = []
        for kk in range(2):
            for ks in range(4):
                for t in range(2):
                    idx = (kk * 8 + ks * 2 + t)
                    fr = FR + (idx % 8) * 4
                    a = VADDR + 2 * ks + t
                    off = slot_off + kk * 8192
                    rd = [f'ds_read_b64_tr_b16 {v(fr, 2)}, v{a} offset:{off}',
                          f'ds_read_b64_tr_b16 {v(fr + 2, 2)}, v{a} offset:{off + 1024}']
                    mm = []
                    for it in range(2):
                        acc = Qf(it, ks) + 4 * t
                        xb = ((2 * j + kk) * 2 + it) * 4
                        c = '0' if (j == 0 and kk == 0) else v(acc, 4)
                        mm.append(f'{MFMA} {v(acc, 4)}, {v(fr, 4)}, {v(xb, 4)}, {c}')
                    seq.append((rd, mm))
        AHEAD = 6
        for i in range(AHEAD):
            for x in seq[i][0]:
                e(x)
        for i in range(16):
            for x in seq[i][1]:
                e(x)
            if i + AHEAD < 16:
                for x in seq[i + AHEAD][0]:
                    e(x)
    qconv = []
    for it in range(2):
        for ks in range(4):
            q0, q1 = Qf(it, ks), Qf(it, ks) + 4
            qconv += [f'v_cvt_pk_bf16_f32 v{q1}, v{q1}, v{q1 + 1}',
                      f'v_cvt_pk_bf16_f32 v{q1 + 1}, v{q1 + 2}, v{q1 + 3}',
                      f'v_cvt_pk_bf16_f32 v{q1 + 2}, v{q0}, v{q0 + 1}',
                      f'v_cvt_pk_bf16_f32 v{q1 + 3}, v{q0 + 2}, v{q0 + 3}',
                      f'v_cndmask_b32_e64 v{q0}, v{q1 + 2}, v{q1}, s[{sMASK}:{sMASK + 1}]',
                      f'v_cndmask_b32_e64 v{q0 + 1}, v{q1 + 3}, v{q1 + 1}, s[{sMASK}:{sMASK + 1}]',
                      f'v_cndmask_b32_e64 v{q0 + 2}, v{q1}, v{q1 + 2}, s[{sMASK}:{sMASK + 1}]',
                      f'v_cndmask_b32_e64 v{q0 + 3}, v{q1 + 1}, v{q1 + 3}, s[{sMASK}:{sMASK + 1}]']
    for ee in range(4):
        for t in range(2):
            qconv.append(f'v_xor_b32 v{VADDR + 2 * ee + t}, {64 * ee + 8 * t}, v{VLOW}')
    qconv.append(f'v_mov_b32 v{VOFF}, v{VT2}')

    win = {'k': 0, 'v': 0}

    def set_window(which, slot):
        w = slot >> 2
        out = []
        if w != win[which]:
            d = (w - win[which]) * 65536
            regs = range(KADDR, KADDR + 4) if which == 'k' else range(VADDR, VADDR + 8)
            for r_ in regs:
                if d > 0:
                    out.append(f'v_add_u32 v{r_}, {d}, v{r_}')
                else:
                    out.append(f'v_subrev_u32 v{r_}, {-d}, v{r_}')
            win[which] = w
        return out

    def max_stream(t, first):
        b = S0 + t * 16
        out = []
        vals = list(range(b, b + 16))
        if first:
            out.append(f'v_max3_f32 v{VM}, v{vals[0]}, v{vals[1]}, v{vals[2]}')
            out.append(f'v_max_f32 v{VM}, v{VM}, v{vals[3]}')
            vals = vals[4:]
        for k in range(0, len(vals), 2):
            out.append(f'v_max3_f32 v{VM}, v{VM}, v{vals[k]}, v{vals[k + 1]}')
        return out

    def exp_stream(t):
        b = S0 + t * 16
        out = []
        for u in range(2):
            bb = b + 8 * u
            for k in range(8):
                out.append(f'v_fma_f32 v{bb + k}, v{bb + k}, s{sC}, -v{VMC}')
            for k in range(8):
                out.append(f'v_exp_f32 v{bb + k}, v{bb + k}')
            for k in range(4):
                out.append(f'v_cvt_pk_bf16_f32 v{bb + k}, v{bb + 2 * k}, v{bb + 2 * k + 1}')
        return out

    def epilogue(it):
        out = [f'v_rcp_f32 v{VT}, v{LACC}']
        so = f's{sOIT}' if it else '0'
        smod = (' ' + CFG['store_mod']) if CFG['store_mod'] else ''
        for ee in range(4):
            o0, o1 = Oacc(ee, 0), Oacc(ee, 1)
            for k in range(4):
                out.append(f'v_mul_f32 v{o0 + k}, v{o0 + k}, v{VT}')
            for k in range(4):
                out.append(f'v_mul_f32 v{o1 + k}, v{o1 + k}, v{VT}')
            out += [f'v_cvt_pk_bf16_f32 v{o0}, v{o0}, v{o0 + 1}',
                    f'v_cvt_pk_bf16_f32 v{o0 + 1}, v{o0 + 2}, v{o0 + 3}',
                    f'v_cvt_pk_bf16_f32 v{o0 + 2}, v{o1}, v{o1 + 1}',
                    f'v_cvt_pk_bf16_f32 v{o0 + 3}, v{o1 + 2}, v{o1 + 3}',
                    f'v_cndmask_b32_e64 v{o1}, v{o0}, v{o0 + 2}, s[{sMASK}:{sMASK + 1}]',
                    f'v_cndmask_b32_e64 v{o1 + 1}, v{o0 + 1}, v{o0 + 3}, s[{sMASK}:{sMASK + 1}]',
                    f'v_cndmask_b32_e64 v{o1 + 2}, v{o0 + 2}, v{o0}, s[{sMASK}:{sMASK + 1}]',
                    f'v_cndmask_b32_e64 v{o1 + 3}, v{o0 + 3}, v{o0 + 1}, s[{sMASK}:{sMASK + 1}]',
                    f'buffer_store_dwordx4 {v(o1, 4)}, v{VOFF}, s[{sO}:{sO + 3}], {so} offen offset:{ee * 1024}{smod}']
        return out

    pending = qconv
    for it in range(2):
        for t in range(8):
            n = it * 16 + t
            slot = n % R
            P.wait_tag(('kv', n))
            e('s_barrier')
            after_kvbar(P, n)
            for x in pending:
                e(x)
            pending = []
            for x in set_window('k', slot):
                e(x)
            so = (slot & 3) * 16384
            rd, mm = [], []
            for kt in range(4):
                for ks in range(4):
                    idx = kt * 4 + ks
                    fr = FR + (idx % 8) * 4
                    rd.append(f'ds_read_b128 {v(fr, 4)}, v{KADDR + ks} offset:{so + kt * 4096}')
                    acc = S0 + t * 16 + kt * 4
                    c = '0' if ks == 0 else v(acc, 4)
                    mm.append(f'{MFMA} {v(acc, 4)}, {v(fr, 4)}, {v(Qf(it, ks), 4)}, {c}')
            main = rd[:8]
            for i in range(16):
                main.append(mm[i])
                if i + 8 < 16:
                    main.append(rd[i + 8])
            side = max_stream(t - 1, t == 1) if t >= 1 else []
            for x in (rd[:8] + merge(main[8:], side)):
                e(x)
        for t in range(8):
            n = it * 16 + 8 + t
            slot = n % R
            P.wait_tag(('kv', n))
            e('s_barrier')
            after_kvbar(P, n)
            for x in set_window('v', slot):
                e(x)
            so = (slot & 3) * 16384
            seq = []
            for u in range(2):
                pb = S0 + t * 16 + 8 * u
                for ee in range(4):
                    for tt in range(2):
                        idx = u * 8 + ee * 2 + tt
                        fr = FR + (idx % 8) * 4
                        a = VADDR + 2 * ee + tt
                        off = so + u * 8192
                        rd = [f'ds_read_b64_tr_b16 {v(fr, 2)}, v{a} offset:{off}',
                              f'ds_read_b64_tr_b16 {v(fr + 2, 2)}, v{a} offset:{off + 4096}']
                        acc = Oacc(ee, tt)
                        c = '0' if (t == 0 and u == 0) else v(acc, 4)
                        mm = [f'{MFMA} {v(acc, 4)}, {v(fr, 4)}, {v(pb, 4)}, {c}']
                        if ee == 3 and tt == 1:
                            c = '0' if (t == 0 and u == 0) else v(LACC, 4)
                            mm.append(f'{MFMA} {v(LACC, 4)}, {v(ONES, 4)}, {v(pb, 4)}, {c}')
                        seq.append((rd, mm))
            AHEAD = 6
            head = [x for i in range(AHEAD) for x in seq[i][0]]
            main = []
            for i in range(16):
                main += seq[i][1]
                if i + AHEAD < 16:
                    main += seq[i + AHEAD][0]
            for x in head:
                e(x)
            if t == 0:
                for x in max_stream(7, False):
                    e(x)
                e(f'v_mov_b32 v{VT}, v{VM}')
                e(f'v_permlane32_swap_b32 v{VM}, v{VT}')
                e(f'v_max_f32 v{VM}, v{VM}, v{VT}')
                e(f'v_mov_b32 v{VT}, v{VM}')
                e(f'v_permlane16_swap_b32 v{VM}, v{VT}')
                e(f'v_max_f32 v{VM}, v{VM}, v{VT}')
                e(f'v_mul_f32 v{VMC}, s{sC}, v{VM}')
                for x in exp_stream(0):
                    e(x)
                if not CFG['interleave']:
                    for tt in range(1, 8):
                        for x in exp_stream(tt):
                            e(x)
            side = exp_stream(t + 1) if (t < 7 and CFG['interleave']) else []
            for x in merge(main, side):
                e(x)
        pending = epilogue(it)
    for x in pending:
        e(x)
    if CFG['prof']:
        e('s_waitcnt vmcnt(0)')
        e('s_barrier')
    e('s_endpgm')

    L = Prog()
    L.label('L_k1_loader')
    def stamp(reg, idx, real=False):
        if CFG['prof']:
            L.raw('  s_memrealtime s[60:61]' if real else '  s_memtime s[60:61]')
            L.raw('  s_waitcnt lgkmcnt(0)')
            L.raw(f'  v_writelane_b32 v{reg}, s60, {idx}')
    stamp(12, 0, True)
    stamp(12, 1)
    for j in range(4):
        dma_w(L, j)
    for n in range(6):
        dma_kv(L, n)
    for j in range(8):
        L.wait_tag(('w', j))
        stamp(11, j)
        L.emit('s_barrier')
        stamp(10, j)
        after_wbar(L, j)
    for n in range(32):
        L.wait_tag(('kv', n))
        stamp(11, 8 + n)
        L.emit('s_barrier')
        stamp(10, 8 + n)
        after_kvbar(L, n)
    if CFG['prof']:
        L.emit('s_barrier')
        stamp(10, 40)
        stamp(12, 2, True)
        stamp(12, 3)
        L.emit('s_lshl_b32 s50, s2, 10')
        L.emit('s_add_u32 s50, s50, 0x4000000')
        L.emit('s_add_u32 s64, s12, s50')
        L.emit('s_addc_u32 s65, s13, 0')
        L.emit('s_mov_b32 s66, 1024')
        L.emit('s_mov_b32 s67, 0x20000')
        L.emit('v_lshlrev_b32 v13, 2, v2')
        L.emit('buffer_store_dword v10, v13, s[64:67], 0 offen')
        L.emit('buffer_store_dword v11, v13, s[64:67], 0 offen offset:256')
        L.emit('buffer_store_dword v12, v13, s[64:67], 0 offen offset:512')
    L.label('L_k1_done')
    L.emit('s_endpgm')
    return P.text() + L.text()


def gen_k2():
    D = CFG['k2_depth']
    P = Prog()
    e = P.emit
    ACC = 0
    OF = 64
    AF = OF + D * 16
    TA = AF + 32
    DW = TA + 4
    VO = DW + 2
    VR = VO + 1
    VS = VR + 1
    sOs, sWo, sD = 16, 20, 24
    sWV, sM0, sT, sT2, sMK = 36, 37, 38, 39, 42

    def acc(qq, ee, t):
        return ACC + ((qq * 2 + ee) * 2 + t) * 4

    P.raw('.p2align 8')
    P.raw('.type oproj_kernel,@function')
    P.label('oproj_kernel')
    e('s_cmp_ge_u32 s2, 224')
    e('s_cbranch_scc1 L_k2_done')
    if CFG['prof'] == 2:
        P.raw('  s_memrealtime s[70:71]')
        P.raw('  s_load_dwordx2 s[64:65], s[0:1], 88')
    e('s_and_b32 s3, s2, 7')
    e('s_lshr_b32 s44, s2, 3')
    e('s_lshr_b32 s45, s3, 2')
    e('s_mul_i32 s46, s45, 40')
    e('s_add_u32 s46, s46, 32')
    e('s_load_dwordx2 s[4:5], s[0:1], s46')
    e('s_load_dwordx2 s[6:7], s[0:1], 80')
    e('s_load_dwordx2 s[8:9], s[0:1], 96')
    e('s_mul_i32 s47, s44, 37')
    e('s_lshr_b32 s47, s47, 8')
    e('s_mul_i32 s48, s47, 7')
    e('s_sub_u32 s48, s44, s48')
    e('s_bfe_u32 s49, s3, 0x10001')
    e('s_mul_i32 s49, s49, 7')
    e('s_add_u32 s48, s48, s49')
    e('s_and_b32 s49, s3, 1')
    e('s_lshl_b32 s49, s49, 2')
    e('s_add_u32 s47, s47, s49')
    t0 = 200
    e(f'v_lshrrev_b32 v{t0}, 6, v0')
    e(f'v_and_b32 v{t0 + 1}, 63, v0')
    e(f'v_readfirstlane_b32 s{sWV}, v{t0}')
    L_, G_, I_, R_, C_ = t0 + 1, t0 + 2, t0 + 3, t0 + 4, t0 + 5
    e(f'v_lshrrev_b32 v{G_}, 4, v{L_}')
    e(f'v_and_b32 v{I_}, 15, v{L_}')
    e(f'v_bfe_u32 v{R_}, v{L_}, 2, 2')
    e(f'v_and_b32 v{C_}, 3, v{L_}')
    e(f's_mul_i32 s{sM0}, s{sWV}, {D * 4096}')
    a_, b_, c_ = t0 + 6, t0 + 7, t0 + 8
    e(f's_lshl_b32 s50, s{sWV}, 14')
    e(f'v_lshlrev_b32 v{a_}, 4, v{L_}')
    e(f'v_add_u32 v{VO}, s50, v{a_}')
    e(f'v_lshrrev_b32 v{a_}, 3, v{L_}')
    e(f'v_bfe_u32 v{b_}, v{L_}, 4, 1')
    e(f'v_and_b32 v{c_}, 7, v{L_}')
    e(f'v_xor_b32 v{b_}, v{b_}, v{c_}')
    e(f'v_lshlrev_b32 v{b_}, 4, v{b_}')
    e(f'v_lshl_add_u32 v{a_}, v{a_}, 10, v{b_}')
    e(f's_lshl_b32 s50, s{sWV}, 19')
    e(f'v_add_u32 v{DW}, s50, v{a_}')
    e(f'v_xor_b32 v{DW + 1}, 64, v{DW}')
    e(f'v_add_u32 v{DW + 1}, {8192 - 1024}, v{DW + 1}')
    e(f'v_lshrrev_b32 v{a_}, 1, v{R_}')
    e(f'v_and_b32 v{b_}, 1, v{G_}')
    e(f'v_cmp_eq_u32_e64 s[{sMK}:{sMK + 1}], 1, v{b_}')
    e(f'v_lshl_or_b32 v{a_}, v{b_}, 2, v{a_}')
    e(f'v_xor_b32 v{a_}, v{a_}, v{C_}')
    e(f'v_lshlrev_b32 v{a_}, 4, v{a_}')
    e(f'v_and_b32 v{b_}, 1, v{C_}')
    e(f'v_lshl_or_b32 v{a_}, v{b_}, 3, v{a_}')
    e(f'v_lshl_add_u32 v{b_}, v{G_}, 3, v{R_}')
    e(f'v_lshl_add_u32 v{a_}, v{b_}, 7, v{a_}')
    e(f'v_add_u32 v{a_}, s{sM0}, v{a_}')
    for ee in range(2):
        for t in range(2):
            e(f'v_xor_b32 v{TA + 2 * ee + t}, {64 * ee + 8 * t}, v{a_}')
    e(f'v_lshlrev_b32 v{a_}, 4, v{L_}')
    e(f's_lshl_b32 s50, s{sWV}, 11')
    e(f'v_add_u32 v{VR}, s50, v{a_}')
    e(f's_lshr_b32 s50, s{sWV}, 1')
    e('s_lshl_b32 s50, s50, 15')
    e(f's_and_b32 s51, s{sWV}, 1')
    e('s_lshl_b32 s51, s51, 6')
    e('s_add_u32 s50, s50, s51')
    e(f'v_lshlrev_b32 v{a_}, 11, v{I_}')
    e(f'v_lshl_add_u32 v{a_}, v{G_}, 4, v{a_}')
    e(f'v_add_u32 v{VS}, s50, v{a_}')
    e('s_waitcnt lgkmcnt(0)')
    e('s_mul_i32 s50, s45, 56')
    e('s_lshl_b32 s51, s48, 2')
    e('s_add_u32 s50, s50, s51')
    e('s_lshl_b32 s50, s50, 17')
    e(f's_add_u32 s{sOs}, s8, s50')
    e(f's_addc_u32 s{sOs + 1}, s9, 0')
    e(f's_mov_b32 s{sOs + 2}, {4 * 131072}')
    e(f's_mov_b32 s{sOs + 3}, 0x20000')
    e('s_lshl_b32 s50, s47, 7')
    e(f's_add_u32 s{sWo}, s4, s50')
    e(f's_addc_u32 s{sWo + 1}, s5, 0')
    e(f's_sub_u32 s{sWo + 2}, 0x400000, s50')
    e(f's_mov_b32 s{sWo + 3}, 0x20000')
    e('s_lshl_b32 s50, s48, 17')
    e('s_lshl_b32 s51, s45, 10')
    e('s_add_u32 s50, s50, s51')
    e('s_lshl_b32 s51, s47, 7')
    e('s_add_u32 s50, s50, s51')
    e(f's_add_u32 s{sD}, s6, s50')
    e(f's_addc_u32 s{sD + 1}, s7, 0')
    e(f's_sub_u32 s{sD + 2}, {896 * 2048}, s50')
    e(f's_mov_b32 s{sD + 3}, 0x20000')

    def issue(kk):
        st = kk % D
        e(f's_add_u32 m0, s{sM0}, {st * 4096}')
        e(f's_mov_b32 s{sT}, {kk * 32768}')
        e(f's_mov_b32 s{sT2}, {kk * 32768 + 16384 - 2048}')
        for m in range(4):
            so = sT if m < 2 else sT2
            e(f'buffer_load_dwordx4 v{DW + (m & 1)}, s[{sWo}:{sWo + 3}], s{so} offen offset:{m * 1024} lds', tag=('wo', kk))
        for qq in range(4):
            e(f's_mov_b32 s{sT}, {qq * 131072 + (kk >> 2) * 4096}')
            e(f'buffer_load_dwordx4 {v(OF + st * 16 + qq * 4, 4)}, v{VO}, s[{sOs}:{sOs + 3}], s{sT} offen offset:{(kk & 3) * 1024}')

    def reads(kk):
        st = kk % D
        out = []
        for ee in range(2):
            for t in range(2):
                fr = AF + (kk & 1) * 16 + (ee * 2 + t) * 4
                out += [f'ds_read_b64_tr_b16 {v(fr, 2)}, v{TA + 2 * ee + t} offset:{st * 4096}',
                        f'ds_read_b64_tr_b16 {v(fr + 2, 2)}, v{TA + 2 * ee + t} offset:{st * 4096 + 512}']
        return out

    for kk in range(D):
        issue(kk)
    P.wait_tag(('wo', 0))
    for x in reads(0):
        e(x)
    for kk in range(16):
        st = kk % D
        if kk + 1 < 16:
            P.wait_tag(('wo', kk + 1))
            for x in reads(kk + 1):
                e(x)
        for ee in range(2):
            for t in range(2):
                fr = AF + (kk & 1) * 16 + (ee * 2 + t) * 4
                for qq in range(4):
                    a = acc(qq, ee, t)
                    c = '0' if kk == 0 else v(a, 4)
                    e(f'{MFMA} {v(a, 4)}, {v(fr, 4)}, {v(OF + st * 16 + qq * 4, 4)}, {c}')
        if kk + D < 16:
            issue(kk + D)
    e('s_barrier')
    e(f'v_lshlrev_b32 v{TA}, 3, v{VR}')
    e(f'v_and_b32 v{TA + 1}, 0x3ff, v{VR}')
    e(f'v_and_b32 v{TA}, 0xffffc000, v{TA}')
    e(f'v_or_b32 v{TA}, v{TA}, v{TA + 1}')
    for tl in range(16):
        e(f'ds_write_b128 v{TA}, {v(ACC + tl * 4, 4)} offset:{tl * 1024}')
    P.wait_lgkm(0)
    e('s_barrier')
    RB = 64
    e(f'v_add_u32 v{TA + 2}, 65536, v{VR}')
    for p in range(8):
        for t in range(2):
            a = VR if p < 4 else TA + 2
            e(f'ds_read_b128 {v(RB + (p * 2 + t) * 4, 4)}, v{a} offset:{(p & 3) * 16384 + t * 1024}')
    for p in range(1, 8):
        for k in range(8):
            e(f'v_add_f32 v{RB + k}, v{RB + k}, v{RB + p * 8 + k}')
    o0, o1 = RB, RB + 4
    for x in [f'v_cvt_pk_bf16_f32 v{o0}, v{o0}, v{o0 + 1}',
              f'v_cvt_pk_bf16_f32 v{o0 + 1}, v{o0 + 2}, v{o0 + 3}',
              f'v_cvt_pk_bf16_f32 v{o0 + 2}, v{o1}, v{o1 + 1}',
              f'v_cvt_pk_bf16_f32 v{o0 + 3}, v{o1 + 2}, v{o1 + 3}',
              f'v_cndmask_b32_e64 v{o1}, v{o0}, v{o0 + 2}, s[{sMK}:{sMK + 1}]',
              f'v_cndmask_b32_e64 v{o1 + 1}, v{o0 + 1}, v{o0 + 3}, s[{sMK}:{sMK + 1}]',
              f'v_cndmask_b32_e64 v{o1 + 2}, v{o0 + 2}, v{o0}, s[{sMK}:{sMK + 1}]',
              f'v_cndmask_b32_e64 v{o1 + 3}, v{o0 + 3}, v{o0 + 1}, s[{sMK}:{sMK + 1}]',
              f'buffer_store_dwordx4 {v(o1, 4)}, v{VS}, s[{sD}:{sD + 3}], 0 offen']:
        e(x)
    if CFG['prof'] == 2:
        P.raw('  s_waitcnt vmcnt(0)')
        P.raw('  s_barrier')
        P.raw('  s_memrealtime s[72:73]')
        P.raw('  s_waitcnt lgkmcnt(0)')
        P.raw(f'  s_cmp_lg_u32 s{sWV}, 0')
        P.raw('  s_cbranch_scc1 L_k2_done')
        P.raw('  s_mov_b32 s66, 256')
        P.raw('  s_mov_b32 s67, 0x20000')
        P.raw('  s_not_b32 s70, s70')
        P.raw('  v_mov_b32 v14, s70')
        P.raw('  v_mov_b32 v15, s72')
        P.raw('  v_mov_b32 v16, 0')
        P.raw('  s_mov_b64 exec, 1')
        P.raw('  buffer_atomic_umax v14, v16, s[64:67], 0 offen offset:8')
        P.raw('  buffer_atomic_umax v15, v16, s[64:67], 0 offen offset:12')
        P.raw('  s_mov_b64 exec, -1')
        P.raw('  s_cmp_lg_u32 s2, 0')
        P.raw('  s_cbranch_scc1 L_k2_done')
        P.raw('  s_add_u32 s76, s8, 0x4000000')
        P.raw('  s_addc_u32 s77, s9, 0')
        P.raw('  s_mov_b32 s78, 0x40000')
        P.raw('  s_mov_b32 s79, 0x20000')
        P.raw('  v_lshlrev_b32 v17, 10, v201')
        for q in range(4):
            P.raw(f'  s_mov_b32 s50, {q * 65536}')
            P.raw(f'  buffer_load_dwordx4 v[20:23], v17, s[76:79], s50 offen offset:512')
            P.raw('  s_waitcnt vmcnt(0)')
            P.raw('  v_not_b32 v20, v20')
            P.raw('  buffer_atomic_umax v20, v16, s[64:67], 0 offen')
            P.raw('  buffer_atomic_umax v22, v16, s[64:67], 0 offen offset:4')
            P.raw('  s_waitcnt vmcnt(0)')
        P.raw('  v_lshlrev_b32 v17, 4, v201')
        P.raw('  buffer_load_dword v20, v17, s[76:79], 0 offen')
        P.raw('  buffer_load_dword v21, v16, s[76:79], 0 offen offset:516')
        P.raw('  s_waitcnt vmcnt(0)')
        P.raw('  v_sub_u32 v20, v20, v21')
        P.raw('  v_lshlrev_b32 v17, 2, v201')
        P.raw('  s_mov_b64 exec, 0x7ff')
        P.raw('  buffer_store_dword v20, v17, s[64:67], 0 offen offset:16')
    P.label('L_k2_done')
    e('s_endpgm')
    return P.text()


HEADER = open('cdna_kernels/' + NAME + '.s.ref').read().split('; Override launch')[0]


def desc(name):
    return f'''.p2align 6
.amdhsa_kernel {name}
  .amdhsa_next_free_vgpr 256
  .amdhsa_next_free_sgpr 102
  .amdhsa_accum_offset 256
  .amdhsa_group_segment_fixed_size 0
  .amdhsa_kernarg_size 104
  .amdhsa_user_sgpr_count 2
  .amdhsa_user_sgpr_kernarg_segment_ptr 1
  .amdhsa_system_sgpr_workgroup_id_x 1
.end_amdhsa_kernel
'''


def main():
    out = HEADER
    out += '; @launch kernel=attn_kernel grid=(256,1,1) block=(512,1,1) lds=163840\n'
    out += '; @launch kernel=oproj_kernel grid=(224,1,1) block=(512,1,1) lds=163840\n'
    out += '.amdgcn_target "amdgcn-amd-amdhsa--gfx950"\n.text\n.globl attn_kernel\n.globl oproj_kernel\n'
    out += gen_k1() + gen_k2()
    out += '.section .rodata,"a"\n' + desc('attn_kernel') + desc('oproj_kernel')
    path = sys.argv[1] if len(sys.argv) > 1 else 'cdna_kernels/' + NAME + '.s'
    open(path, 'w').write(out)
    import subprocess
    r = subprocess.run(['clang', '-x', 'assembler', '-target', 'amdgcn-amd-amdhsa', '-mcpu=gfx950', '-c', path, '-o', 'chk.o'], capture_output=True, text=True)
    print('wrote', path, len(out), 'bytes', 'ASM OK' if r.returncode == 0 else 'ASM FAIL\n' + r.stderr[:600])


main()
```

```python
import sys, os
sys.path.insert(0, os.path.dirname(__file__))
from asmlib import Prog, Ins, v, s, merge

NAME = 'concat_heads__mha_block_cached__gqa_block_cached__near_ridge'
CFG = dict(R=8, interleave=True, store_mod='', kv_mod='', k2_depth=5, prof=0, spin1=0, spin2=0, spin1c=0)
for a in sys.argv[2:]:
    k_, v_ = a.split('=')
    CFG[k_] = type(CFG[k_])(int(v_)) if not isinstance(CFG[k_], str) else v_.replace('+', ' ')

MFMA = 'v_mfma_f32_16x16x32_bf16'
SCALE_C = 128 ** -0.5 * 1.4426950408889634
import struct
def f32hex(x):
    return '0x%08x' % struct.unpack('<I', struct.pack('<f', x))[0]

sX, sK, sV, sW, sO = 16, 20, 24, 28, 32
sWAVE, sM0B, sSOFF, sXIT, sC, sOIT, sMASK = 36, 37, 38, 39, 40, 41, 42
S0 = 0
QO = 128
FR = 192
LACC = 224
ONES = 228
KADDR = 232
VADDR = 236
DK = 244
DV = 246
DWQ = 248
VM = 250
VT = 251
VMC = 252
VOFF = 253
VLOW = 254
VT2 = 255


def Qf(it, ks):
    return QO + 8 * (4 * it + ks)


def Oacc(e, t):
    return QO + 8 * (2 * e + t) + 4


def gen_k1():
    R = CFG['R']
    kvmod = (' ' + CFG['kv_mod']) if CFG['kv_mod'] else ''
    P = Prog()
    e = P.emit
    P.raw('.p2align 8')
    P.raw('.type attn_kernel,@function')
    P.label('attn_kernel')
    e('s_cmp_ge_u32 s2, 256')
    e('s_cbranch_scc1 L_k1_done')
    e('s_and_b32 s3, s2, 7')
    e('s_lshr_b32 s44, s2, 3')
    e('s_lshr_b32 s45, s3, 2')
    e('s_mul_i32 s46, s45, 40')
    e('s_load_dwordx8 s[4:11], s[0:1], s46')
    e('s_load_dwordx2 s[12:13], s[0:1], 96')
    e('s_and_b32 s47, s3, 3')
    e('s_lshl_b32 s47, s47, 3')
    e('s_lshr_b32 s48, s44, 2')
    e('s_add_u32 s47, s47, s48')
    e('s_and_b32 s48, s44, 3')
    e('v_lshrrev_b32 v1, 6, v0')
    e('v_and_b32 v2, 63, v0')
    e(f'v_readfirstlane_b32 s{sWAVE}, v1')
    e('v_lshrrev_b32 v3, 4, v2')
    e('v_and_b32 v4, 15, v2')
    e('v_bfe_u32 v5, v2, 2, 2')
    e('v_and_b32 v6, 3, v2')
    e(f's_lshl_b32 s{sM0B}, s{sWAVE}, 11')
    e(f's_and_b32 s49, s{sWAVE}, 1')
    e('v_and_b32 v7, 1, v3')
    e('v_lshrrev_b32 v8, 1, v3')
    e('v_lshl_or_b32 v7, v8, 2, v7')
    e('s_lshl_b32 s50, s49, 3')
    e('v_or_b32 v8, s50, v7')
    e('v_xor_b32 v8, v8, v4')
    e('v_lshlrev_b32 v8, 4, v8')
    e(f's_lshl_b32 s50, s{sWAVE}, 3')
    e('v_add_u32 v9, s50, v3')
    e(f'v_lshl_add_u32 v{DWQ}, v9, 13, v8')
    e(f'v_add_u32 v{DWQ + 1}, {4 * 8192 - 1024}, v{DWQ}')
    e('v_lshlrev_b32 v9, 8, v3')
    e(f'v_add_u32 v9, s{sM0B}, v9')
    e('v_xor_b32 v8, v7, v4')
    e(f'v_lshl_add_u32 v{DV}, v8, 4, v9')
    e('v_xor_b32 v8, 8, v8')
    e(f'v_lshl_add_u32 v{DV + 1}, v8, 4, v9')
    e('s_lshl_b32 s50, s49, 2')
    e('v_xor_b32 v8, s50, v3')
    e('v_lshlrev_b32 v8, 1, v8')
    e('v_or_b32 v8, s49, v8')
    e('v_xor_b32 v8, v8, v4')
    e(f'v_lshl_add_u32 v{DK}, v8, 4, v9')
    e('v_xor_b32 v8, 8, v8')
    e(f'v_lshl_add_u32 v{DK + 1}, v8, 4, v9')
    e('s_waitcnt lgkmcnt(0)')
    e('s_lshl_b32 s50, s47, 8')
    e(f's_add_u32 s{sW}, s10, s50')
    e(f's_addc_u32 s{sW + 1}, s11, 0')
    e(f's_sub_u32 s{sW + 2}, 0x400000, s50')
    e(f's_mov_b32 s{sW + 3}, 0x20000')
    e('s_mul_i32 s50, s48, 114688')
    e(f's_add_u32 s{sX}, s4, s50')
    e(f's_addc_u32 s{sX + 1}, s5, 0')
    e(f's_mov_b32 s{sX + 2}, {5 * 114688}')
    e(f's_mov_b32 s{sX + 3}, 0x20000')
    e('s_lshl_b32 s50, s48, 5')
    e('s_add_u32 s50, s50, s47')
    e('s_lshl_b32 s50, s50, 17')
    e(f's_add_u32 s{sK}, s6, s50')
    e(f's_addc_u32 s{sK + 1}, s7, 0')
    e(f's_mov_b32 s{sK + 2}, {4 * 4194304 + 131072}')
    e(f's_mov_b32 s{sK + 3}, 0x20000')
    e(f's_add_u32 s{sV}, s8, s50')
    e(f's_addc_u32 s{sV + 1}, s9, 0')
    e(f's_mov_b32 s{sV + 2}, {4 * 4194304 + 131072}')
    e(f's_mov_b32 s{sV + 3}, 0x20000')
    e('s_lshl_b32 s50, s45, 3')
    e('s_add_u32 s50, s50, s48')
    e('s_mul_i32 s50, s50, 224')
    e('s_add_u32 s50, s50, s47')
    e('s_lshl_b32 s50, s50, 12')
    e(f's_add_u32 s{sO}, s12, s50')
    e(f's_addc_u32 s{sO + 1}, s13, 0')
    e(f's_mov_b32 s{sO + 2}, {4 * 7 * 131072 + 6 * 131072 + 4096}')
    e(f's_mov_b32 s{sO + 3}, 0x20000')
    e(f's_mov_b32 s{sXIT}, {4 * 114688}')
    e(f's_mov_b32 s{sOIT}, {4 * 7 * 131072}')
    e(f's_mov_b32 s{sC}, {f32hex(SCALE_C)}')

    def dma_w(P, j):
        slot = 6 + (j & 3)
        P.emit(f's_add_u32 m0, s{sM0B}, {slot * 16384}')
        P.emit(f's_mov_b32 s{sSOFF}, {j * 524288}')
        for m in range(2):
            P.emit(f'buffer_load_dwordx4 v{DWQ + m}, s[{sW}:{sW + 3}], s{sSOFF} offen offset:{m * 1024} lds', tag=('w', j))

    def dma_kv(P, n):
        if n >= 32:
            return
        it, isv, t = n >> 4, (n >> 3) & 1, n & 7
        slot = n % R
        P.emit(f's_add_u32 m0, s{sM0B}, {slot * 16384}')
        P.emit(f's_mov_b32 s{sSOFF}, {it * 4 * 4194304 + t * 16384}')
        srd, d = (sV, DV) if isv else (sK, DK)
        for m in range(2):
            P.emit(f'buffer_load_dwordx4 v{d + m}, s[{srd}:{srd + 3}], s{sSOFF} offen offset:{m * 1024}{kvmod} lds', tag=('kv', n))

    def after_wbar(P, j):
        if j >= 1:
            if j + 3 <= 7:
                dma_w(P, j + 3)
            else:
                n = 6 + (j - 5)
                if n < R:
                    dma_kv(P, n)

    def after_kvbar(P, n):
        if n == 0:
            if R == 10:
                dma_kv(P, 9)
        else:
            dma_kv(P, n - 1 + R)

    e(f's_cmp_eq_u32 s{sWAVE}, 7')
    e('s_cbranch_scc1 L_k1_loader')

    e(f's_lshl_b32 s50, s{sWAVE}, 4')
    e('v_add_u32 v8, s50, v4')
    e('v_lshlrev_b32 v8, 10, v8')
    e(f'v_lshl_add_u32 v{VOFF}, v3, 4, v8')
    e('v_and_b32 v8, 1, v5')
    e('v_lshrrev_b32 v9, 1, v5')
    e('v_lshl_or_b32 v8, v9, 2, v8')
    e('v_and_b32 v9, 1, v3')
    e('v_lshl_or_b32 v8, v9, 3, v8')
    e('v_xor_b32 v8, v8, v6')
    e('v_lshlrev_b32 v8, 4, v8')
    e('v_and_b32 v10, 1, v6')
    e('v_lshl_or_b32 v8, v10, 3, v8')
    e(f'v_cmp_eq_u32_e64 s[{sMASK}:{sMASK + 1}], 1, v9')
    e('v_lshl_add_u32 v10, v3, 3, v5')
    e('v_lshl_add_u32 v10, v10, 8, v8')
    e('v_add_u32 v10, 98304, v10')
    for ks in range(4):
        for t in range(2):
            e(f'v_xor_b32 v{VADDR + 2 * ks + t}, {64 * ks + 8 * t}, v10')
    e('v_lshl_add_u32 v10, v3, 2, v5')
    e(f'v_lshl_add_u32 v{VLOW}, v10, 8, v8')
    e('v_lshrrev_b32 v9, 3, v4')
    e('v_and_b32 v10, 7, v4')
    e('v_lshlrev_b32 v11, 2, v9')
    e('v_xor_b32 v10, v10, v11')
    e('v_lshl_or_b32 v10, v10, 1, v9')
    e('v_xor_b32 v10, v10, v3')
    e('v_lshlrev_b32 v10, 4, v10')
    e('v_lshl_add_u32 v10, v4, 8, v10')
    for ks in range(4):
        e(f'v_xor_b32 v{KADDR + ks}, {64 * ks}, v10')
    e(f's_lshl_b32 s50, s{sWAVE}, 17')
    e('v_lshlrev_b32 v9, 4, v2')
    e(f'v_add_u32 v{VT2}, s50, v9')
    for k in range(4):
        e(f'v_mov_b32 v{ONES + k}, 0x3f803f80')

    def xload(P, kstep, it):
        dst = (kstep * 2 + it) * 4
        so = f's{sXIT}' if it else '0'
        P.emit(f'buffer_load_dwordx4 {v(dst, 4)}, v{VOFF}, s[{sX}:{sX + 3}], {so} offen offset:{kstep * 64}')

    for j in range(4):
        dma_w(P, j)
        for kk in range(2):
            for it in range(2):
                xload(P, 2 * j + kk, it)
    for n in range(2):
        dma_kv(P, n)
    for ks in range(8, 16):
        for it in range(2):
            xload(P, ks, it)
    for n in range(2, 6):
        dma_kv(P, n)

    for j in range(8):
        P.comment(f'W step {j}')
        P.wait_tag(('w', j))
        e('s_barrier')
        after_wbar(P, j)
        slot_off = (j & 3) * 16384
        seq = []
        for kk in range(2):
            for ks in range(4):
                for t in range(2):
                    idx = (kk * 8 + ks * 2 + t)
                    fr = FR + (idx % 8) * 4
                    a = VADDR + 2 * ks + t
                    off = slot_off + kk * 8192
                    rd = [f'ds_read_b64_tr_b16 {v(fr, 2)}, v{a} offset:{off}',
                          f'ds_read_b64_tr_b16 {v(fr + 2, 2)}, v{a} offset:{off + 1024}']
                    mm = []
                    for it in range(2):
                        acc = Qf(it, ks) + 4 * t
                        xb = ((2 * j + kk) * 2 + it) * 4
                        c = '0' if (j == 0 and kk == 0) else v(acc, 4)
                        mm.append(f'{MFMA} {v(acc, 4)}, {v(fr, 4)}, {v(xb, 4)}, {c}')
                    seq.append((rd, mm))
        AHEAD = 6
        for i in range(AHEAD):
            for x in seq[i][0]:
                e(x)
        for i in range(16):
            for x in seq[i][1]:
                e(x)
            if i + AHEAD < 16:
                for x in seq[i + AHEAD][0]:
                    e(x)
    qconv = []
    for it in range(2):
        for ks in range(4):
            q0, q1 = Qf(it, ks), Qf(it, ks) + 4
            qconv += [f'v_cvt_pk_bf16_f32 v{q1}, v{q1}, v{q1 + 1}',
                      f'v_cvt_pk_bf16_f32 v{q1 + 1}, v{q1 + 2}, v{q1 + 3}',
                      f'v_cvt_pk_bf16_f32 v{q1 + 2}, v{q0}, v{q0 + 1}',
                      f'v_cvt_pk_bf16_f32 v{q1 + 3}, v{q0 + 2}, v{q0 + 3}',
                      f'v_cndmask_b32_e64 v{q0}, v{q1 + 2}, v{q1}, s[{sMASK}:{sMASK + 1}]',
                      f'v_cndmask_b32_e64 v{q0 + 1}, v{q1 + 3}, v{q1 + 1}, s[{sMASK}:{sMASK + 1}]',
                      f'v_cndmask_b32_e64 v{q0 + 2}, v{q1}, v{q1 + 2}, s[{sMASK}:{sMASK + 1}]',
                      f'v_cndmask_b32_e64 v{q0 + 3}, v{q1 + 1}, v{q1 + 3}, s[{sMASK}:{sMASK + 1}]']
    for ee in range(4):
        for t in range(2):
            qconv.append(f'v_xor_b32 v{VADDR + 2 * ee + t}, {64 * ee + 8 * t}, v{VLOW}')
    qconv.append(f'v_mov_b32 v{VOFF}, v{VT2}')

    win = {'k': 0, 'v': 0}

    def set_window(which, slot):
        w = slot >> 2
        out = []
        if w != win[which]:
            d = (w - win[which]) * 65536
            regs = range(KADDR, KADDR + 4) if which == 'k' else range(VADDR, VADDR + 8)
            for r_ in regs:
                if d > 0:
                    out.append(f'v_add_u32 v{r_}, {d}, v{r_}')
                else:
                    out.append(f'v_subrev_u32 v{r_}, {-d}, v{r_}')
            win[which] = w
        return out

    def max_stream(t, first):
        b = S0 + t * 16
        out = []
        vals = list(range(b, b + 16))
        if first:
            out.append(f'v_max3_f32 v{VM}, v{vals[0]}, v{vals[1]}, v{vals[2]}')
            out.append(f'v_max_f32 v{VM}, v{VM}, v{vals[3]}')
            vals = vals[4:]
        for k in range(0, len(vals), 2):
            out.append(f'v_max3_f32 v{VM}, v{VM}, v{vals[k]}, v{vals[k + 1]}')
        return out

    def exp_stream(t):
        b = S0 + t * 16
        out = []
        for u in range(2):
            bb = b + 8 * u
            for k in range(8):
                out.append(f'v_fma_f32 v{bb + k}, v{bb + k}, s{sC}, -v{VMC}')
            for k in range(8):
                out.append(f'v_exp_f32 v{bb + k}, v{bb + k}')
            for k in range(4):
                out.append(f'v_cvt_pk_bf16_f32 v{bb + k}, v{bb + 2 * k}, v{bb + 2 * k + 1}')
        return out

    def epilogue(it):
        out = [f'v_rcp_f32 v{VT}, v{LACC}']
        so = f's{sOIT}' if it else '0'
        smod = (' ' + CFG['store_mod']) if CFG['store_mod'] else ''
        for ee in range(4):
            o0, o1 = Oacc(ee, 0), Oacc(ee, 1)
            for k in range(4):
                out.append(f'v_mul_f32 v{o0 + k}, v{o0 + k}, v{VT}')
            for k in range(4):
                out.append(f'v_mul_f32 v{o1 + k}, v{o1 + k}, v{VT}')
            out += [f'v_cvt_pk_bf16_f32 v{o0}, v{o0}, v{o0 + 1}',
                    f'v_cvt_pk_bf16_f32 v{o0 + 1}, v{o0 + 2}, v{o0 + 3}',
                    f'v_cvt_pk_bf16_f32 v{o0 + 2}, v{o1}, v{o1 + 1}',
                    f'v_cvt_pk_bf16_f32 v{o0 + 3}, v{o1 + 2}, v{o1 + 3}',
                    f'v_cndmask_b32_e64 v{o1}, v{o0}, v{o0 + 2}, s[{sMASK}:{sMASK + 1}]',
                    f'v_cndmask_b32_e64 v{o1 + 1}, v{o0 + 1}, v{o0 + 3}, s[{sMASK}:{sMASK + 1}]',
                    f'v_cndmask_b32_e64 v{o1 + 2}, v{o0 + 2}, v{o0}, s[{sMASK}:{sMASK + 1}]',
                    f'v_cndmask_b32_e64 v{o1 + 3}, v{o0 + 3}, v{o0 + 1}, s[{sMASK}:{sMASK + 1}]',
                    f'buffer_store_dwordx4 {v(o1, 4)}, v{VOFF}, s[{sO}:{sO + 3}], {so} offen offset:{ee * 1024}{smod}']
        return out

    pending = qconv
    for it in range(2):
        for t in range(8):
            n = it * 16 + t
            slot = n % R
            P.wait_tag(('kv', n))
            e('s_barrier')
            after_kvbar(P, n)
            for x in pending:
                e(x)
            pending = []
            for x in set_window('k', slot):
                e(x)
            so = (slot & 3) * 16384
            rd, mm = [], []
            for kt in range(4):
                for ks in range(4):
                    idx = kt * 4 + ks
                    fr = FR + (idx % 8) * 4
                    rd.append(f'ds_read_b128 {v(fr, 4)}, v{KADDR + ks} offset:{so + kt * 4096}')
                    acc = S0 + t * 16 + kt * 4
                    c = '0' if ks == 0 else v(acc, 4)
                    mm.append(f'{MFMA} {v(acc, 4)}, {v(fr, 4)}, {v(Qf(it, ks), 4)}, {c}')
            main = rd[:8]
            for i in range(16):
                main.append(mm[i])
                if i + 8 < 16:
                    main.append(rd[i + 8])
            side = max_stream(t - 1, t == 1) if t >= 1 else []
            for x in (rd[:8] + merge(main[8:], side)):
                e(x)
        for t in range(8):
            n = it * 16 + 8 + t
            slot = n % R
            P.wait_tag(('kv', n))
            e('s_barrier')
            after_kvbar(P, n)
            for x in set_window('v', slot):
                e(x)
            so = (slot & 3) * 16384
            seq = []
            for u in range(2):
                pb = S0 + t * 16 + 8 * u
                for ee in range(4):
                    for tt in range(2):
                        idx = u * 8 + ee * 2 + tt
                        fr = FR + (idx % 8) * 4
                        a = VADDR + 2 * ee + tt
                        off = so + u * 8192
                        rd = [f'ds_read_b64_tr_b16 {v(fr, 2)}, v{a} offset:{off}',
                              f'ds_read_b64_tr_b16 {v(fr + 2, 2)}, v{a} offset:{off + 4096}']
                        acc = Oacc(ee, tt)
                        c = '0' if (t == 0 and u == 0) else v(acc, 4)
                        mm = [f'{MFMA} {v(acc, 4)}, {v(fr, 4)}, {v(pb, 4)}, {c}']
                        if ee == 3 and tt == 1:
                            c = '0' if (t == 0 and u == 0) else v(LACC, 4)
                            mm.append(f'{MFMA} {v(LACC, 4)}, {v(ONES, 4)}, {v(pb, 4)}, {c}')
                        seq.append((rd, mm))
            AHEAD = 6
            head = [x for i in range(AHEAD) for x in seq[i][0]]
            main = []
            for i in range(16):
                main += seq[i][1]
                if i + AHEAD < 16:
                    main += seq[i + AHEAD][0]
            for x in head:
                e(x)
            if t == 0:
                for x in max_stream(7, False):
                    e(x)
                e(f'v_mov_b32 v{VT}, v{VM}')
                e(f'v_permlane32_swap_b32 v{VM}, v{VT}')
                e(f'v_max_f32 v{VM}, v{VM}, v{VT}')
                e(f'v_mov_b32 v{VT}, v{VM}')
                e(f'v_permlane16_swap_b32 v{VM}, v{VT}')
                e(f'v_max_f32 v{VM}, v{VM}, v{VT}')
                e(f'v_mul_f32 v{VMC}, s{sC}, v{VM}')
                for x in exp_stream(0):
                    e(x)
                if not CFG['interleave']:
                    for tt in range(1, 8):
                        for x in exp_stream(tt):
                            e(x)
            side = exp_stream(t + 1) if (t < 7 and CFG['interleave']) else []
            for x in merge(main, side):
                e(x)
        pending = epilogue(it)
    for x in pending:
        e(x)
    if CFG['prof']:
        e('s_waitcnt vmcnt(0)')
        e('s_barrier')
    e('s_endpgm')

    L = Prog()
    L.label('L_k1_loader')
    def stamp(reg, idx, real=False):
        if CFG['prof']:
            L.raw('  s_memrealtime s[60:61]' if real else '  s_memtime s[60:61]')
            L.raw('  s_waitcnt lgkmcnt(0)')
            L.raw(f'  v_writelane_b32 v{reg}, s60, {idx}')
    stamp(12, 0, True)
    stamp(12, 1)
    if CFG['spin1'] or CFG['spin1c']:
        L.raw('  s_memrealtime s[70:71]' if CFG['spin1'] else '  s_memtime s[70:71]')
        L.raw('  s_waitcnt lgkmcnt(0)')
    for j in range(4):
        dma_w(L, j)
    for n in range(6):
        dma_kv(L, n)
    for j in range(8):
        L.wait_tag(('w', j))
        stamp(11, j)
        L.emit('s_barrier')
        stamp(10, j)
        after_wbar(L, j)
    for n in range(32):
        L.wait_tag(('kv', n))
        stamp(11, 8 + n)
        L.emit('s_barrier')
        stamp(10, 8 + n)
        after_kvbar(L, n)
    if CFG['prof']:
        L.emit('s_barrier')
        stamp(10, 40)
        stamp(12, 2, True)
        stamp(12, 3)
        L.emit('s_lshl_b32 s50, s2, 10')
        L.emit('s_add_u32 s50, s50, 0x4000000')
        L.emit('s_add_u32 s64, s12, s50')
        L.emit('s_addc_u32 s65, s13, 0')
        L.emit('s_mov_b32 s66, 1024')
        L.emit('s_mov_b32 s67, 0x20000')
        L.emit('v_lshlrev_b32 v13, 2, v2')
        L.emit('buffer_store_dword v10, v13, s[64:67], 0 offen')
        L.emit('buffer_store_dword v11, v13, s[64:67], 0 offen offset:256')
        L.emit('buffer_store_dword v12, v13, s[64:67], 0 offen offset:512')
    if CFG['spin1'] or CFG['spin1c']:
        L.raw('  s_cmp_lg_u32 s2, 0')
        L.raw('  s_cbranch_scc1 L_k1_done')
        L.label('L_k1_spin')
        L.raw('  s_memrealtime s[72:73]' if CFG['spin1'] else '  s_memtime s[72:73]')
        L.raw('  s_waitcnt lgkmcnt(0)')
        L.raw('  s_sub_u32 s72, s72, s70')
        L.raw(f'  s_cmp_lt_u32 s72, {CFG["spin1"] or CFG["spin1c"]}')
        L.raw('  s_cbranch_scc1 L_k1_spin')
    L.label('L_k1_done')
    L.emit('s_endpgm')
    return P.text() + L.text()


def gen_k2():
    D = CFG['k2_depth']
    P = Prog()
    e = P.emit
    ACC = 0
    OF = 64
    AF = OF + D * 16
    TA = AF + 32
    DW = TA + 4
    VO = DW + 2
    VR = VO + 1
    VS = VR + 1
    sOs, sWo, sD = 16, 20, 24
    sWV, sM0, sT, sT2, sMK = 36, 37, 38, 39, 42

    def acc(qq, ee, t):
        return ACC + ((qq * 2 + ee) * 2 + t) * 4

    P.raw('.p2align 8')
    P.raw('.type oproj_kernel,@function')
    P.label('oproj_kernel')
    e('s_cmp_ge_u32 s2, 224')
    e('s_cbranch_scc1 L_k2_done')
    if CFG['spin2']:
        P.raw('  s_memrealtime s[70:71]')
    if CFG['prof'] == 2:
        P.raw('  s_memrealtime s[70:71]')
        P.raw('  s_load_dwordx2 s[64:65], s[0:1], 88')
    e('s_and_b32 s3, s2, 7')
    e('s_lshr_b32 s44, s2, 3')
    e('s_lshr_b32 s45, s3, 2')
    e('s_mul_i32 s46, s45, 40')
    e('s_add_u32 s46, s46, 32')
    e('s_load_dwordx2 s[4:5], s[0:1], s46')
    e('s_load_dwordx2 s[6:7], s[0:1], 80')
    e('s_load_dwordx2 s[8:9], s[0:1], 96')
    e('s_mul_i32 s47, s44, 37')
    e('s_lshr_b32 s47, s47, 8')
    e('s_mul_i32 s48, s47, 7')
    e('s_sub_u32 s48, s44, s48')
    e('s_bfe_u32 s49, s3, 0x10001')
    e('s_mul_i32 s49, s49, 7')
    e('s_add_u32 s48, s48, s49')
    e('s_and_b32 s49, s3, 1')
    e('s_lshl_b32 s49, s49, 2')
    e('s_add_u32 s47, s47, s49')
    t0 = 200
    e(f'v_lshrrev_b32 v{t0}, 6, v0')
    e(f'v_and_b32 v{t0 + 1}, 63, v0')
    e(f'v_readfirstlane_b32 s{sWV}, v{t0}')
    L_, G_, I_, R_, C_ = t0 + 1, t0 + 2, t0 + 3, t0 + 4, t0 + 5
    e(f'v_lshrrev_b32 v{G_}, 4, v{L_}')
    e(f'v_and_b32 v{I_}, 15, v{L_}')
    e(f'v_bfe_u32 v{R_}, v{L_}, 2, 2')
    e(f'v_and_b32 v{C_}, 3, v{L_}')
    e(f's_mul_i32 s{sM0}, s{sWV}, {D * 4096}')
    a_, b_, c_ = t0 + 6, t0 + 7, t0 + 8
    e(f's_lshl_b32 s50, s{sWV}, 14')
    e(f'v_lshlrev_b32 v{a_}, 4, v{L_}')
    e(f'v_add_u32 v{VO}, s50, v{a_}')
    e(f'v_lshrrev_b32 v{a_}, 3, v{L_}')
    e(f'v_bfe_u32 v{b_}, v{L_}, 4, 1')
    e(f'v_and_b32 v{c_}, 7, v{L_}')
    e(f'v_xor_b32 v{b_}, v{b_}, v{c_}')
    e(f'v_lshlrev_b32 v{b_}, 4, v{b_}')
    e(f'v_lshl_add_u32 v{a_}, v{a_}, 10, v{b_}')
    e(f's_lshl_b32 s50, s{sWV}, 19')
    e(f'v_add_u32 v{DW}, s50, v{a_}')
    e(f'v_xor_b32 v{DW + 1}, 64, v{DW}')
    e(f'v_add_u32 v{DW + 1}, {8192 - 1024}, v{DW + 1}')
    e(f'v_lshrrev_b32 v{a_}, 1, v{R_}')
    e(f'v_and_b32 v{b_}, 1, v{G_}')
    e(f'v_cmp_eq_u32_e64 s[{sMK}:{sMK + 1}], 1, v{b_}')
    e(f'v_lshl_or_b32 v{a_}, v{b_}, 2, v{a_}')
    e(f'v_xor_b32 v{a_}, v{a_}, v{C_}')
    e(f'v_lshlrev_b32 v{a_}, 4, v{a_}')
    e(f'v_and_b32 v{b_}, 1, v{C_}')
    e(f'v_lshl_or_b32 v{a_}, v{b_}, 3, v{a_}')
    e(f'v_lshl_add_u32 v{b_}, v{G_}, 3, v{R_}')
    e(f'v_lshl_add_u32 v{a_}, v{b_}, 7, v{a_}')
    e(f'v_add_u32 v{a_}, s{sM0}, v{a_}')
    for ee in range(2):
        for t in range(2):
            e(f'v_xor_b32 v{TA + 2 * ee + t}, {64 * ee + 8 * t}, v{a_}')
    e(f'v_lshlrev_b32 v{a_}, 4, v{L_}')
    e(f's_lshl_b32 s50, s{sWV}, 11')
    e(f'v_add_u32 v{VR}, s50, v{a_}')
    e(f's_lshr_b32 s50, s{sWV}, 1')
    e('s_lshl_b32 s50, s50, 15')
    e(f's_and_b32 s51, s{sWV}, 1')
    e('s_lshl_b32 s51, s51, 6')
    e('s_add_u32 s50, s50, s51')
    e(f'v_lshlrev_b32 v{a_}, 11, v{I_}')
    e(f'v_lshl_add_u32 v{a_}, v{G_}, 4, v{a_}')
    e(f'v_add_u32 v{VS}, s50, v{a_}')
    e('s_waitcnt lgkmcnt(0)')
    e('s_mul_i32 s50, s45, 56')
    e('s_lshl_b32 s51, s48, 2')
    e('s_add_u32 s50, s50, s51')
    e('s_lshl_b32 s50, s50, 17')
    e(f's_add_u32 s{sOs}, s8, s50')
    e(f's_addc_u32 s{sOs + 1}, s9, 0')
    e(f's_mov_b32 s{sOs + 2}, {4 * 131072}')
    e(f's_mov_b32 s{sOs + 3}, 0x20000')
    e('s_lshl_b32 s50, s47, 7')
    e(f's_add_u32 s{sWo}, s4, s50')
    e(f's_addc_u32 s{sWo + 1}, s5, 0')
    e(f's_sub_u32 s{sWo + 2}, 0x400000, s50')
    e(f's_mov_b32 s{sWo + 3}, 0x20000')
    e('s_lshl_b32 s50, s48, 17')
    e('s_lshl_b32 s51, s45, 10')
    e('s_add_u32 s50, s50, s51')
    e('s_lshl_b32 s51, s47, 7')
    e('s_add_u32 s50, s50, s51')
    e(f's_add_u32 s{sD}, s6, s50')
    e(f's_addc_u32 s{sD + 1}, s7, 0')
    e(f's_sub_u32 s{sD + 2}, {896 * 2048}, s50')
    e(f's_mov_b32 s{sD + 3}, 0x20000')

    def issue(kk):
        st = kk % D
        e(f's_add_u32 m0, s{sM0}, {st * 4096}')
        e(f's_mov_b32 s{sT}, {kk * 32768}')
        e(f's_mov_b32 s{sT2}, {kk * 32768 + 16384 - 2048}')
        for m in range(4):
            so = sT if m < 2 else sT2
            e(f'buffer_load_dwordx4 v{DW + (m & 1)}, s[{sWo}:{sWo + 3}], s{so} offen offset:{m * 1024} lds', tag=('wo', kk))
        for qq in range(4):
            e(f's_mov_b32 s{sT}, {qq * 131072 + (kk >> 2) * 4096}')
            e(f'buffer_load_dwordx4 {v(OF + st * 16 + qq * 4, 4)}, v{VO}, s[{sOs}:{sOs + 3}], s{sT} offen offset:{(kk & 3) * 1024}')

    def reads(kk):
        st = kk % D
        out = []
        for ee in range(2):
            for t in range(2):
                fr = AF + (kk & 1) * 16 + (ee * 2 + t) * 4
                out += [f'ds_read_b64_tr_b16 {v(fr, 2)}, v{TA + 2 * ee + t} offset:{st * 4096}',
                        f'ds_read_b64_tr_b16 {v(fr + 2, 2)}, v{TA + 2 * ee + t} offset:{st * 4096 + 512}']
        return out

    for kk in range(D):
        issue(kk)
    P.wait_tag(('wo', 0))
    for x in reads(0):
        e(x)
    for kk in range(16):
        st = kk % D
        if kk + 1 < 16:
            P.wait_tag(('wo', kk + 1))
            for x in reads(kk + 1):
                e(x)
        for ee in range(2):
            for t in range(2):
                fr = AF + (kk & 1) * 16 + (ee * 2 + t) * 4
                for qq in range(4):
                    a = acc(qq, ee, t)
                    c = '0' if kk == 0 else v(a, 4)
                    e(f'{MFMA} {v(a, 4)}, {v(fr, 4)}, {v(OF + st * 16 + qq * 4, 4)}, {c}')
        if kk + D < 16:
            issue(kk + D)
    e('s_barrier')
    e(f'v_lshlrev_b32 v{TA}, 3, v{VR}')
    e(f'v_and_b32 v{TA + 1}, 0x3ff, v{VR}')
    e(f'v_and_b32 v{TA}, 0xffffc000, v{TA}')
    e(f'v_or_b32 v{TA}, v{TA}, v{TA + 1}')
    for tl in range(16):
        e(f'ds_write_b128 v{TA}, {v(ACC + tl * 4, 4)} offset:{tl * 1024}')
    P.wait_lgkm(0)
    e('s_barrier')
    RB = 64
    e(f'v_add_u32 v{TA + 2}, 65536, v{VR}')
    for p in range(8):
        for t in range(2):
            a = VR if p < 4 else TA + 2
            e(f'ds_read_b128 {v(RB + (p * 2 + t) * 4, 4)}, v{a} offset:{(p & 3) * 16384 + t * 1024}')
    for p in range(1, 8):
        for k in range(8):
            e(f'v_add_f32 v{RB + k}, v{RB + k}, v{RB + p * 8 + k}')
    o0, o1 = RB, RB + 4
    for x in [f'v_cvt_pk_bf16_f32 v{o0}, v{o0}, v{o0 + 1}',
              f'v_cvt_pk_bf16_f32 v{o0 + 1}, v{o0 + 2}, v{o0 + 3}',
              f'v_cvt_pk_bf16_f32 v{o0 + 2}, v{o1}, v{o1 + 1}',
              f'v_cvt_pk_bf16_f32 v{o0 + 3}, v{o1 + 2}, v{o1 + 3}',
              f'v_cndmask_b32_e64 v{o1}, v{o0}, v{o0 + 2}, s[{sMK}:{sMK + 1}]',
              f'v_cndmask_b32_e64 v{o1 + 1}, v{o0 + 1}, v{o0 + 3}, s[{sMK}:{sMK + 1}]',
              f'v_cndmask_b32_e64 v{o1 + 2}, v{o0 + 2}, v{o0}, s[{sMK}:{sMK + 1}]',
              f'v_cndmask_b32_e64 v{o1 + 3}, v{o0 + 3}, v{o0 + 1}, s[{sMK}:{sMK + 1}]',
              f'buffer_store_dwordx4 {v(o1, 4)}, v{VS}, s[{sD}:{sD + 3}], 0 offen']:
        e(x)
    if CFG['prof'] == 2:
        P.raw('  s_waitcnt vmcnt(0)')
        P.raw('  s_barrier')
        P.raw('  s_memrealtime s[72:73]')
        P.raw('  s_waitcnt lgkmcnt(0)')
        P.raw(f'  s_cmp_lg_u32 s{sWV}, 0')
        P.raw('  s_cbranch_scc1 L_k2_done')
        P.raw('  s_mov_b32 s66, 256')
        P.raw('  s_mov_b32 s67, 0x20000')
        P.raw('  s_not_b32 s70, s70')
        P.raw('  v_mov_b32 v14, s70')
        P.raw('  v_mov_b32 v15, s72')
        P.raw('  v_mov_b32 v16, 0')
        P.raw('  s_mov_b64 exec, 1')
        P.raw('  buffer_atomic_umax v14, v16, s[64:67], 0 offen offset:8')
        P.raw('  buffer_atomic_umax v15, v16, s[64:67], 0 offen offset:12')
        P.raw('  s_mov_b64 exec, -1')
        P.raw('  s_cmp_lg_u32 s2, 0')
        P.raw('  s_cbranch_scc1 L_k2_done')
        P.raw('  s_add_u32 s76, s8, 0x4000000')
        P.raw('  s_addc_u32 s77, s9, 0')
        P.raw('  s_mov_b32 s78, 0x40000')
        P.raw('  s_mov_b32 s79, 0x20000')
        P.raw('  v_lshlrev_b32 v17, 10, v201')
        for q in range(4):
            P.raw(f'  s_mov_b32 s50, {q * 65536}')
            P.raw(f'  buffer_load_dwordx4 v[20:23], v17, s[76:79], s50 offen offset:512')
            P.raw('  s_waitcnt vmcnt(0)')
            P.raw('  v_not_b32 v20, v20')
            P.raw('  buffer_atomic_umax v20, v16, s[64:67], 0 offen')
            P.raw('  buffer_atomic_umax v22, v16, s[64:67], 0 offen offset:4')
            P.raw('  s_waitcnt vmcnt(0)')
        P.raw('  v_lshlrev_b32 v17, 4, v201')
        P.raw('  buffer_load_dword v20, v17, s[76:79], 0 offen')
        P.raw('  buffer_load_dword v21, v16, s[76:79], 0 offen offset:516')
        P.raw('  s_waitcnt vmcnt(0)')
        P.raw('  v_sub_u32 v20, v20, v21')
        P.raw('  v_lshlrev_b32 v17, 2, v201')
        P.raw('  s_mov_b64 exec, 0x7ff')
        P.raw('  buffer_store_dword v20, v17, s[64:67], 0 offen offset:16')
    if CFG['spin2']:
        P.raw('  s_cmp_lg_u32 s2, 0')
        P.raw('  s_cbranch_scc1 L_k2_done')
        P.raw(f'  s_cmp_lg_u32 s{sWV}, 0')
        P.raw('  s_cbranch_scc1 L_k2_done')
        P.label('L_k2_spin')
        P.raw('  s_memrealtime s[72:73]')
        P.raw('  s_waitcnt lgkmcnt(0)')
        P.raw('  s_sub_u32 s72, s72, s70')
        P.raw(f'  s_cmp_lt_u32 s72, {CFG["spin2"]}')
        P.raw('  s_cbranch_scc1 L_k2_spin')
    P.label('L_k2_done')
    e('s_endpgm')
    return P.text()


HEADER = open('cdna_kernels/' + NAME + '.s.ref').read().split('; Override launch')[0]


def desc(name):
    return f'''.p2align 6
.amdhsa_kernel {name}
  .amdhsa_next_free_vgpr 256
  .amdhsa_next_free_sgpr 102
  .amdhsa_accum_offset 256
  .amdhsa_group_segment_fixed_size 0
  .amdhsa_kernarg_size 104
  .amdhsa_user_sgpr_count 2
  .amdhsa_user_sgpr_kernarg_segment_ptr 1
  .amdhsa_system_sgpr_workgroup_id_x 1
.end_amdhsa_kernel
'''


def main():
    out = HEADER
    out += '; @launch kernel=attn_kernel grid=(256,1,1) block=(512,1,1) lds=163840\n'
    out += '; @launch kernel=oproj_kernel grid=(224,1,1) block=(512,1,1) lds=163840\n'
    out += '.amdgcn_target "amdgcn-amd-amdhsa--gfx950"\n.text\n.globl attn_kernel\n.globl oproj_kernel\n'
    out += gen_k1() + gen_k2()
    out += '.section .rodata,"a"\n' + desc('attn_kernel') + desc('oproj_kernel')
    path = sys.argv[1] if len(sys.argv) > 1 else 'cdna_kernels/' + NAME + '.s'
    open(path, 'w').write(out)
    import subprocess
    r = subprocess.run(['clang', '-x', 'assembler', '-target', 'amdgcn-amd-amdhsa', '-mcpu=gfx950', '-c', path, '-o', 'chk.o'], capture_output=True, text=True)
    print('wrote', path, len(out), 'bytes', 'ASM OK' if r.returncode == 0 else 'ASM FAIL\n' + r.stderr[:600])


main()
```

```python
import sys, os
sys.path.insert(0, os.path.dirname(__file__))
from asmlib import Prog, Ins, v, s, merge

NAME = 'concat_heads__mha_block_cached__gqa_block_cached__near_ridge'
CFG = dict(R=8, interleave=True, store_mod='', kv_mod='', k2_depth=5, prof=0, spin1=0, spin2=0, spin1c=0, extra=0)
for a in sys.argv[2:]:
    k_, v_ = a.split('=')
    CFG[k_] = type(CFG[k_])(int(v_)) if not isinstance(CFG[k_], str) else v_.replace('+', ' ')

MFMA = 'v_mfma_f32_16x16x32_bf16'
SCALE_C = 128 ** -0.5 * 1.4426950408889634
import struct
def f32hex(x):
    return '0x%08x' % struct.unpack('<I', struct.pack('<f', x))[0]

sX, sK, sV, sW, sO = 16, 20, 24, 28, 32
sWAVE, sM0B, sSOFF, sXIT, sC, sOIT, sMASK = 36, 37, 38, 39, 40, 41, 42
S0 = 0
QO = 128
FR = 192
LACC = 224
ONES = 228
KADDR = 232
VADDR = 236
DK = 244
DV = 246
DWQ = 248
VM = 250
VT = 251
VMC = 252
VOFF = 253
VLOW = 254
VT2 = 255


def Qf(it, ks):
    return QO + 8 * (4 * it + ks)


def Oacc(e, t):
    return QO + 8 * (2 * e + t) + 4


def gen_k1():
    R = CFG['R']
    kvmod = (' ' + CFG['kv_mod']) if CFG['kv_mod'] else ''
    P = Prog()
    e = P.emit
    P.raw('.p2align 8')
    P.raw('.type attn_kernel,@function')
    P.label('attn_kernel')
    e('s_cmp_ge_u32 s2, 256')
    e('s_cbranch_scc1 L_k1_done')
    e('s_and_b32 s3, s2, 7')
    e('s_lshr_b32 s44, s2, 3')
    e('s_lshr_b32 s45, s3, 2')
    e('s_mul_i32 s46, s45, 40')
    e('s_load_dwordx8 s[4:11], s[0:1], s46')
    e('s_load_dwordx2 s[12:13], s[0:1], 96')
    e('s_and_b32 s47, s3, 3')
    e('s_lshl_b32 s47, s47, 3')
    e('s_lshr_b32 s48, s44, 2')
    e('s_add_u32 s47, s47, s48')
    e('s_and_b32 s48, s44, 3')
    e('v_lshrrev_b32 v1, 6, v0')
    e('v_and_b32 v2, 63, v0')
    e(f'v_readfirstlane_b32 s{sWAVE}, v1')
    e('v_lshrrev_b32 v3, 4, v2')
    e('v_and_b32 v4, 15, v2')
    e('v_bfe_u32 v5, v2, 2, 2')
    e('v_and_b32 v6, 3, v2')
    e(f's_lshl_b32 s{sM0B}, s{sWAVE}, 11')
    e(f's_and_b32 s49, s{sWAVE}, 1')
    e('v_and_b32 v7, 1, v3')
    e('v_lshrrev_b32 v8, 1, v3')
    e('v_lshl_or_b32 v7, v8, 2, v7')
    e('s_lshl_b32 s50, s49, 3')
    e('v_or_b32 v8, s50, v7')
    e('v_xor_b32 v8, v8, v4')
    e('v_lshlrev_b32 v8, 4, v8')
    e(f's_lshl_b32 s50, s{sWAVE}, 3')
    e('v_add_u32 v9, s50, v3')
    e(f'v_lshl_add_u32 v{DWQ}, v9, 13, v8')
    e(f'v_add_u32 v{DWQ + 1}, {4 * 8192 - 1024}, v{DWQ}')
    e('v_lshlrev_b32 v9, 8, v3')
    e(f'v_add_u32 v9, s{sM0B}, v9')
    e('v_xor_b32 v8, v7, v4')
    e(f'v_lshl_add_u32 v{DV}, v8, 4, v9')
    e('v_xor_b32 v8, 8, v8')
    e(f'v_lshl_add_u32 v{DV + 1}, v8, 4, v9')
    e('s_lshl_b32 s50, s49, 2')
    e('v_xor_b32 v8, s50, v3')
    e('v_lshlrev_b32 v8, 1, v8')
    e('v_or_b32 v8, s49, v8')
    e('v_xor_b32 v8, v8, v4')
    e(f'v_lshl_add_u32 v{DK}, v8, 4, v9')
    e('v_xor_b32 v8, 8, v8')
    e(f'v_lshl_add_u32 v{DK + 1}, v8, 4, v9')
    e('s_waitcnt lgkmcnt(0)')
    e('s_lshl_b32 s50, s47, 8')
    e(f's_add_u32 s{sW}, s10, s50')
    e(f's_addc_u32 s{sW + 1}, s11, 0')
    e(f's_sub_u32 s{sW + 2}, 0x400000, s50')
    e(f's_mov_b32 s{sW + 3}, 0x20000')
    e('s_mul_i32 s50, s48, 114688')
    e(f's_add_u32 s{sX}, s4, s50')
    e(f's_addc_u32 s{sX + 1}, s5, 0')
    e(f's_mov_b32 s{sX + 2}, {5 * 114688}')
    e(f's_mov_b32 s{sX + 3}, 0x20000')
    e('s_lshl_b32 s50, s48, 5')
    e('s_add_u32 s50, s50, s47')
    e('s_lshl_b32 s50, s50, 17')
    e(f's_add_u32 s{sK}, s6, s50')
    e(f's_addc_u32 s{sK + 1}, s7, 0')
    e(f's_mov_b32 s{sK + 2}, {4 * 4194304 + 131072}')
    e(f's_mov_b32 s{sK + 3}, 0x20000')
    e(f's_add_u32 s{sV}, s8, s50')
    e(f's_addc_u32 s{sV + 1}, s9, 0')
    e(f's_mov_b32 s{sV + 2}, {4 * 4194304 + 131072}')
    e(f's_mov_b32 s{sV + 3}, 0x20000')
    e('s_lshl_b32 s50, s45, 3')
    e('s_add_u32 s50, s50, s48')
    e('s_mul_i32 s50, s50, 224')
    e('s_add_u32 s50, s50, s47')
    e('s_lshl_b32 s50, s50, 12')
    e(f's_add_u32 s{sO}, s12, s50')
    e(f's_addc_u32 s{sO + 1}, s13, 0')
    e(f's_mov_b32 s{sO + 2}, {4 * 7 * 131072 + 6 * 131072 + 4096}')
    e(f's_mov_b32 s{sO + 3}, 0x20000')
    e(f's_mov_b32 s{sXIT}, {4 * 114688}')
    e(f's_mov_b32 s{sOIT}, {4 * 7 * 131072}')
    e(f's_mov_b32 s{sC}, {f32hex(SCALE_C)}')

    def dma_w(P, j):
        slot = 6 + (j & 3)
        P.emit(f's_add_u32 m0, s{sM0B}, {slot * 16384}')
        P.emit(f's_mov_b32 s{sSOFF}, {j * 524288}')
        for m in range(2):
            P.emit(f'buffer_load_dwordx4 v{DWQ + m}, s[{sW}:{sW + 3}], s{sSOFF} offen offset:{m * 1024} lds', tag=('w', j))

    def dma_kv(P, n):
        if n >= 32:
            return
        it, isv, t = n >> 4, (n >> 3) & 1, n & 7
        slot = n % R
        P.emit(f's_add_u32 m0, s{sM0B}, {slot * 16384}')
        P.emit(f's_mov_b32 s{sSOFF}, {it * 4 * 4194304 + t * 16384}')
        srd, d = (sV, DV) if isv else (sK, DK)
        for m in range(2):
            P.emit(f'buffer_load_dwordx4 v{d + m}, s[{srd}:{srd + 3}], s{sSOFF} offen offset:{m * 1024}{kvmod} lds', tag=('kv', n))

    def after_wbar(P, j):
        if j >= 1:
            if j + 3 <= 7:
                dma_w(P, j + 3)
            else:
                n = 6 + (j - 5)
                if n < R:
                    dma_kv(P, n)

    def after_kvbar(P, n):
        if n == 0:
            if R == 10:
                dma_kv(P, 9)
        else:
            dma_kv(P, n - 1 + R)

    e(f's_cmp_eq_u32 s{sWAVE}, 7')
    e('s_cbranch_scc1 L_k1_loader')

    e(f's_lshl_b32 s50, s{sWAVE}, 4')
    e('v_add_u32 v8, s50, v4')
    e('v_lshlrev_b32 v8, 10, v8')
    e(f'v_lshl_add_u32 v{VOFF}, v3, 4, v8')
    e('v_and_b32 v8, 1, v5')
    e('v_lshrrev_b32 v9, 1, v5')
    e('v_lshl_or_b32 v8, v9, 2, v8')
    e('v_and_b32 v9, 1, v3')
    e('v_lshl_or_b32 v8, v9, 3, v8')
    e('v_xor_b32 v8, v8, v6')
    e('v_lshlrev_b32 v8, 4, v8')
    e('v_and_b32 v10, 1, v6')
    e('v_lshl_or_b32 v8, v10, 3, v8')
    e(f'v_cmp_eq_u32_e64 s[{sMASK}:{sMASK + 1}], 1, v9')
    e('v_lshl_add_u32 v10, v3, 3, v5')
    e('v_lshl_add_u32 v10, v10, 8, v8')
    e('v_add_u32 v10, 98304, v10')
    for ks in range(4):
        for t in range(2):
            e(f'v_xor_b32 v{VADDR + 2 * ks + t}, {64 * ks + 8 * t}, v10')
    e('v_lshl_add_u32 v10, v3, 2, v5')
    e(f'v_lshl_add_u32 v{VLOW}, v10, 8, v8')
    e('v_lshrrev_b32 v9, 3, v4')
    e('v_and_b32 v10, 7, v4')
    e('v_lshlrev_b32 v11, 2, v9')
    e('v_xor_b32 v10, v10, v11')
    e('v_lshl_or_b32 v10, v10, 1, v9')
    e('v_xor_b32 v10, v10, v3')
    e('v_lshlrev_b32 v10, 4, v10')
    e('v_lshl_add_u32 v10, v4, 8, v10')
    for ks in range(4):
        e(f'v_xor_b32 v{KADDR + ks}, {64 * ks}, v10')
    e(f's_lshl_b32 s50, s{sWAVE}, 17')
    e('v_lshlrev_b32 v9, 4, v2')
    e(f'v_add_u32 v{VT2}, s50, v9')
    for k in range(4):
        e(f'v_mov_b32 v{ONES + k}, 0x3f803f80')

    def xload(P, kstep, it):
        dst = (kstep * 2 + it) * 4
        so = f's{sXIT}' if it else '0'
        P.emit(f'buffer_load_dwordx4 {v(dst, 4)}, v{VOFF}, s[{sX}:{sX + 3}], {so} offen offset:{kstep * 64}')

    for j in range(4):
        dma_w(P, j)
        for kk in range(2):
            for it in range(2):
                xload(P, 2 * j + kk, it)
    for n in range(2):
        dma_kv(P, n)
    for ks in range(8, 16):
        for it in range(2):
            xload(P, ks, it)
    for n in range(2, 6):
        dma_kv(P, n)

    for j in range(8):
        P.comment(f'W step {j}')
        P.wait_tag(('w', j))
        e('s_barrier')
        after_wbar(P, j)
        slot_off = (j & 3) * 16384
        seq = []
        for kk in range(2):
            for ks in range(4):
                for t in range(2):
                    idx = (kk * 8 + ks * 2 + t)
                    fr = FR + (idx % 8) * 4
                    a = VADDR + 2 * ks + t
                    off = slot_off + kk * 8192
                    rd = [f'ds_read_b64_tr_b16 {v(fr, 2)}, v{a} offset:{off}',
                          f'ds_read_b64_tr_b16 {v(fr + 2, 2)}, v{a} offset:{off + 1024}']
                    mm = []
                    for it in range(2):
                        acc = Qf(it, ks) + 4 * t
                        xb = ((2 * j + kk) * 2 + it) * 4
                        c = '0' if (j == 0 and kk == 0) else v(acc, 4)
                        mm.append(f'{MFMA} {v(acc, 4)}, {v(fr, 4)}, {v(xb, 4)}, {c}')
                    seq.append((rd, mm))
        AHEAD = 6
        for i in range(AHEAD):
            for x in seq[i][0]:
                e(x)
        for i in range(16):
            for x in seq[i][1]:
                e(x)
            if i + AHEAD < 16:
                for x in seq[i + AHEAD][0]:
                    e(x)
    qconv = []
    for it in range(2):
        for ks in range(4):
            q0, q1 = Qf(it, ks), Qf(it, ks) + 4
            qconv += [f'v_cvt_pk_bf16_f32 v{q1}, v{q1}, v{q1 + 1}',
                      f'v_cvt_pk_bf16_f32 v{q1 + 1}, v{q1 + 2}, v{q1 + 3}',
                      f'v_cvt_pk_bf16_f32 v{q1 + 2}, v{q0}, v{q0 + 1}',
                      f'v_cvt_pk_bf16_f32 v{q1 + 3}, v{q0 + 2}, v{q0 + 3}',
                      f'v_cndmask_b32_e64 v{q0}, v{q1 + 2}, v{q1}, s[{sMASK}:{sMASK + 1}]',
                      f'v_cndmask_b32_e64 v{q0 + 1}, v{q1 + 3}, v{q1 + 1}, s[{sMASK}:{sMASK + 1}]',
                      f'v_cndmask_b32_e64 v{q0 + 2}, v{q1}, v{q1 + 2}, s[{sMASK}:{sMASK + 1}]',
                      f'v_cndmask_b32_e64 v{q0 + 3}, v{q1 + 1}, v{q1 + 3}, s[{sMASK}:{sMASK + 1}]']
    for ee in range(4):
        for t in range(2):
            qconv.append(f'v_xor_b32 v{VADDR + 2 * ee + t}, {64 * ee + 8 * t}, v{VLOW}')
    qconv.append(f'v_mov_b32 v{VOFF}, v{VT2}')

    win = {'k': 0, 'v': 0}

    def set_window(which, slot):
        w = slot >> 2
        out = []
        if w != win[which]:
            d = (w - win[which]) * 65536
            regs = range(KADDR, KADDR + 4) if which == 'k' else range(VADDR, VADDR + 8)
            for r_ in regs:
                if d > 0:
                    out.append(f'v_add_u32 v{r_}, {d}, v{r_}')
                else:
                    out.append(f'v_subrev_u32 v{r_}, {-d}, v{r_}')
            win[which] = w
        return out

    def max_stream(t, first):
        b = S0 + t * 16
        out = []
        vals = list(range(b, b + 16))
        if first:
            out.append(f'v_max3_f32 v{VM}, v{vals[0]}, v{vals[1]}, v{vals[2]}')
            out.append(f'v_max_f32 v{VM}, v{VM}, v{vals[3]}')
            vals = vals[4:]
        for k in range(0, len(vals), 2):
            out.append(f'v_max3_f32 v{VM}, v{VM}, v{vals[k]}, v{vals[k + 1]}')
        return out

    def exp_stream(t):
        b = S0 + t * 16
        out = []
        for u in range(2):
            bb = b + 8 * u
            for k in range(8):
                out.append(f'v_fma_f32 v{bb + k}, v{bb + k}, s{sC}, -v{VMC}')
            for k in range(8):
                out.append(f'v_exp_f32 v{bb + k}, v{bb + k}')
            for k in range(4):
                out.append(f'v_cvt_pk_bf16_f32 v{bb + k}, v{bb + 2 * k}, v{bb + 2 * k + 1}')
        return out

    def epilogue(it):
        out = [f'v_rcp_f32 v{VT}, v{LACC}']
        so = f's{sOIT}' if it else '0'
        smod = (' ' + CFG['store_mod']) if CFG['store_mod'] else ''
        for ee in range(4):
            o0, o1 = Oacc(ee, 0), Oacc(ee, 1)
            for k in range(4):
                out.append(f'v_mul_f32 v{o0 + k}, v{o0 + k}, v{VT}')
            for k in range(4):
                out.append(f'v_mul_f32 v{o1 + k}, v{o1 + k}, v{VT}')
            out += [f'v_cvt_pk_bf16_f32 v{o0}, v{o0}, v{o0 + 1}',
                    f'v_cvt_pk_bf16_f32 v{o0 + 1}, v{o0 + 2}, v{o0 + 3}',
                    f'v_cvt_pk_bf16_f32 v{o0 + 2}, v{o1}, v{o1 + 1}',
                    f'v_cvt_pk_bf16_f32 v{o0 + 3}, v{o1 + 2}, v{o1 + 3}',
                    f'v_cndmask_b32_e64 v{o1}, v{o0}, v{o0 + 2}, s[{sMASK}:{sMASK + 1}]',
                    f'v_cndmask_b32_e64 v{o1 + 1}, v{o0 + 1}, v{o0 + 3}, s[{sMASK}:{sMASK + 1}]',
                    f'v_cndmask_b32_e64 v{o1 + 2}, v{o0 + 2}, v{o0}, s[{sMASK}:{sMASK + 1}]',
                    f'v_cndmask_b32_e64 v{o1 + 3}, v{o0 + 3}, v{o0 + 1}, s[{sMASK}:{sMASK + 1}]',
                    f'buffer_store_dwordx4 {v(o1, 4)}, v{VOFF}, s[{sO}:{sO + 3}], {so} offen offset:{ee * 1024}{smod}']
        return out

    pending = qconv
    for it in range(2):
        for t in range(8):
            n = it * 16 + t
            slot = n % R
            P.wait_tag(('kv', n))
            e('s_barrier')
            after_kvbar(P, n)
            for x in pending:
                e(x)
            pending = []
            for x in set_window('k', slot):
                e(x)
            so = (slot & 3) * 16384
            rd, mm = [], []
            for kt in range(4):
                for ks in range(4):
                    idx = kt * 4 + ks
                    fr = FR + (idx % 8) * 4
                    rd.append(f'ds_read_b128 {v(fr, 4)}, v{KADDR + ks} offset:{so + kt * 4096}')
                    acc = S0 + t * 16 + kt * 4
                    c = '0' if ks == 0 else v(acc, 4)
                    mm.append(f'{MFMA} {v(acc, 4)}, {v(fr, 4)}, {v(Qf(it, ks), 4)}, {c}')
            main = rd[:8]
            for i in range(16):
                main.append(mm[i])
                if i + 8 < 16:
                    main.append(rd[i + 8])
            side = max_stream(t - 1, t == 1) if t >= 1 else []
            for x in (rd[:8] + merge(main[8:], side)):
                e(x)
        for t in range(8):
            n = it * 16 + 8 + t
            slot = n % R
            P.wait_tag(('kv', n))
            e('s_barrier')
            after_kvbar(P, n)
            for x in set_window('v', slot):
                e(x)
            so = (slot & 3) * 16384
            seq = []
            for u in range(2):
                pb = S0 + t * 16 + 8 * u
                for ee in range(4):
                    for tt in range(2):
                        idx = u * 8 + ee * 2 + tt
                        fr = FR + (idx % 8) * 4
                        a = VADDR + 2 * ee + tt
                        off = so + u * 8192
                        rd = [f'ds_read_b64_tr_b16 {v(fr, 2)}, v{a} offset:{off}',
                              f'ds_read_b64_tr_b16 {v(fr + 2, 2)}, v{a} offset:{off + 4096}']
                        acc = Oacc(ee, tt)
                        c = '0' if (t == 0 and u == 0) else v(acc, 4)
                        mm = [f'{MFMA} {v(acc, 4)}, {v(fr, 4)}, {v(pb, 4)}, {c}']
                        if ee == 3 and tt == 1:
                            c = '0' if (t == 0 and u == 0) else v(LACC, 4)
                            mm.append(f'{MFMA} {v(LACC, 4)}, {v(ONES, 4)}, {v(pb, 4)}, {c}')
                        seq.append((rd, mm))
            AHEAD = 6
            head = [x for i in range(AHEAD) for x in seq[i][0]]
            main = []
            for i in range(16):
                main += seq[i][1]
                if i + AHEAD < 16:
                    main += seq[i + AHEAD][0]
            for x in head:
                e(x)
            if t == 0:
                for x in max_stream(7, False):
                    e(x)
                e(f'v_mov_b32 v{VT}, v{VM}')
                e(f'v_permlane32_swap_b32 v{VM}, v{VT}')
                e(f'v_max_f32 v{VM}, v{VM}, v{VT}')
                e(f'v_mov_b32 v{VT}, v{VM}')
                e(f'v_permlane16_swap_b32 v{VM}, v{VT}')
                e(f'v_max_f32 v{VM}, v{VM}, v{VT}')
                e(f'v_mul_f32 v{VMC}, s{sC}, v{VM}')
                for x in exp_stream(0):
                    e(x)
                if not CFG['interleave']:
                    for tt in range(1, 8):
                        for x in exp_stream(tt):
                            e(x)
            side = exp_stream(t + 1) if (t < 7 and CFG['interleave']) else []
            for x in merge(main, side):
                e(x)
        pending = epilogue(it)
    for x in pending:
        e(x)
    if CFG['prof']:
        e('s_waitcnt vmcnt(0)')
        e('s_barrier')
    e('s_endpgm')

    L = Prog()
    L.label('L_k1_loader')
    def stamp(reg, idx, real=False):
        if CFG['prof']:
            L.raw('  s_memrealtime s[60:61]' if real else '  s_memtime s[60:61]')
            L.raw('  s_waitcnt lgkmcnt(0)')
            L.raw(f'  v_writelane_b32 v{reg}, s60, {idx}')
    stamp(12, 0, True)
    stamp(12, 1)
    if CFG['spin1'] or CFG['spin1c']:
        L.raw('  s_memrealtime s[70:71]' if CFG['spin1'] else '  s_memtime s[70:71]')
        L.raw('  s_waitcnt lgkmcnt(0)')
    for j in range(4):
        dma_w(L, j)
    for n in range(6):
        dma_kv(L, n)
    for j in range(8):
        L.wait_tag(('w', j))
        stamp(11, j)
        L.emit('s_barrier')
        stamp(10, j)
        after_wbar(L, j)
    for n in range(32):
        L.wait_tag(('kv', n))
        stamp(11, 8 + n)
        L.emit('s_barrier')
        stamp(10, 8 + n)
        after_kvbar(L, n)
    if CFG['prof']:
        L.emit('s_barrier')
        stamp(10, 40)
        stamp(12, 2, True)
        stamp(12, 3)
        L.emit('s_lshl_b32 s50, s2, 10')
        L.emit('s_add_u32 s50, s50, 0x4000000')
        L.emit('s_add_u32 s64, s12, s50')
        L.emit('s_addc_u32 s65, s13, 0')
        L.emit('s_mov_b32 s66, 1024')
        L.emit('s_mov_b32 s67, 0x20000')
        L.emit('v_lshlrev_b32 v13, 2, v2')
        L.emit('buffer_store_dword v10, v13, s[64:67], 0 offen')
        L.emit('buffer_store_dword v11, v13, s[64:67], 0 offen offset:256')
        L.emit('buffer_store_dword v12, v13, s[64:67], 0 offen offset:512')
    if CFG['spin1'] or CFG['spin1c']:
        L.raw('  s_cmp_lg_u32 s2, 0')
        L.raw('  s_cbranch_scc1 L_k1_done')
        L.label('L_k1_spin')
        L.raw('  s_memrealtime s[72:73]' if CFG['spin1'] else '  s_memtime s[72:73]')
        L.raw('  s_waitcnt lgkmcnt(0)')
        L.raw('  s_sub_u32 s72, s72, s70')
        L.raw(f'  s_cmp_lt_u32 s72, {CFG["spin1"] or CFG["spin1c"]}')
        L.raw('  s_cbranch_scc1 L_k1_spin')
    L.label('L_k1_done')
    L.emit('s_endpgm')
    return P.text() + L.text()


def gen_k2():
    D = CFG['k2_depth']
    P = Prog()
    e = P.emit
    ACC = 0
    OF = 64
    AF = OF + D * 16
    TA = AF + 32
    DW = TA + 4
    VO = DW + 2
    VR = VO + 1
    VS = VR + 1
    sOs, sWo, sD = 16, 20, 24
    sWV, sM0, sT, sT2, sMK = 36, 37, 38, 39, 42

    def acc(qq, ee, t):
        return ACC + ((qq * 2 + ee) * 2 + t) * 4

    P.raw('.p2align 8')
    P.raw('.type oproj_kernel,@function')
    P.label('oproj_kernel')
    e('s_cmp_ge_u32 s2, 224')
    e('s_cbranch_scc1 L_k2_done')
    if CFG['spin2']:
        P.raw('  s_memrealtime s[70:71]')
    if CFG['prof'] == 2:
        P.raw('  s_memrealtime s[70:71]')
        P.raw('  s_load_dwordx2 s[64:65], s[0:1], 88')
    e('s_and_b32 s3, s2, 7')
    e('s_lshr_b32 s44, s2, 3')
    e('s_lshr_b32 s45, s3, 2')
    e('s_mul_i32 s46, s45, 40')
    e('s_add_u32 s46, s46, 32')
    e('s_load_dwordx2 s[4:5], s[0:1], s46')
    e('s_load_dwordx2 s[6:7], s[0:1], 80')
    e('s_load_dwordx2 s[8:9], s[0:1], 96')
    e('s_mul_i32 s47, s44, 37')
    e('s_lshr_b32 s47, s47, 8')
    e('s_mul_i32 s48, s47, 7')
    e('s_sub_u32 s48, s44, s48')
    e('s_bfe_u32 s49, s3, 0x10001')
    e('s_mul_i32 s49, s49, 7')
    e('s_add_u32 s48, s48, s49')
    e('s_and_b32 s49, s3, 1')
    e('s_lshl_b32 s49, s49, 2')
    e('s_add_u32 s47, s47, s49')
    t0 = 200
    e(f'v_lshrrev_b32 v{t0}, 6, v0')
    e(f'v_and_b32 v{t0 + 1}, 63, v0')
    e(f'v_readfirstlane_b32 s{sWV}, v{t0}')
    L_, G_, I_, R_, C_ = t0 + 1, t0 + 2, t0 + 3, t0 + 4, t0 + 5
    e(f'v_lshrrev_b32 v{G_}, 4, v{L_}')
    e(f'v_and_b32 v{I_}, 15, v{L_}')
    e(f'v_bfe_u32 v{R_}, v{L_}, 2, 2')
    e(f'v_and_b32 v{C_}, 3, v{L_}')
    e(f's_mul_i32 s{sM0}, s{sWV}, {D * 4096}')
    a_, b_, c_ = t0 + 6, t0 + 7, t0 + 8
    e(f's_lshl_b32 s50, s{sWV}, 14')
    e(f'v_lshlrev_b32 v{a_}, 4, v{L_}')
    e(f'v_add_u32 v{VO}, s50, v{a_}')
    e(f'v_lshrrev_b32 v{a_}, 3, v{L_}')
    e(f'v_bfe_u32 v{b_}, v{L_}, 4, 1')
    e(f'v_and_b32 v{c_}, 7, v{L_}')
    e(f'v_xor_b32 v{b_}, v{b_}, v{c_}')
    e(f'v_lshlrev_b32 v{b_}, 4, v{b_}')
    e(f'v_lshl_add_u32 v{a_}, v{a_}, 10, v{b_}')
    e(f's_lshl_b32 s50, s{sWV}, 19')
    e(f'v_add_u32 v{DW}, s50, v{a_}')
    e(f'v_xor_b32 v{DW + 1}, 64, v{DW}')
    e(f'v_add_u32 v{DW + 1}, {8192 - 1024}, v{DW + 1}')
    e(f'v_lshrrev_b32 v{a_}, 1, v{R_}')
    e(f'v_and_b32 v{b_}, 1, v{G_}')
    e(f'v_cmp_eq_u32_e64 s[{sMK}:{sMK + 1}], 1, v{b_}')
    e(f'v_lshl_or_b32 v{a_}, v{b_}, 2, v{a_}')
    e(f'v_xor_b32 v{a_}, v{a_}, v{C_}')
    e(f'v_lshlrev_b32 v{a_}, 4, v{a_}')
    e(f'v_and_b32 v{b_}, 1, v{C_}')
    e(f'v_lshl_or_b32 v{a_}, v{b_}, 3, v{a_}')
    e(f'v_lshl_add_u32 v{b_}, v{G_}, 3, v{R_}')
    e(f'v_lshl_add_u32 v{a_}, v{b_}, 7, v{a_}')
    e(f'v_add_u32 v{a_}, s{sM0}, v{a_}')
    for ee in range(2):
        for t in range(2):
            e(f'v_xor_b32 v{TA + 2 * ee + t}, {64 * ee + 8 * t}, v{a_}')
    e(f'v_lshlrev_b32 v{a_}, 4, v{L_}')
    e(f's_lshl_b32 s50, s{sWV}, 11')
    e(f'v_add_u32 v{VR}, s50, v{a_}')
    e(f's_lshr_b32 s50, s{sWV}, 1')
    e('s_lshl_b32 s50, s50, 15')
    e(f's_and_b32 s51, s{sWV}, 1')
    e('s_lshl_b32 s51, s51, 6')
    e('s_add_u32 s50, s50, s51')
    e(f'v_lshlrev_b32 v{a_}, 11, v{I_}')
    e(f'v_lshl_add_u32 v{a_}, v{G_}, 4, v{a_}')
    e(f'v_add_u32 v{VS}, s50, v{a_}')
    e('s_waitcnt lgkmcnt(0)')
    e('s_mul_i32 s50, s45, 56')
    e('s_lshl_b32 s51, s48, 2')
    e('s_add_u32 s50, s50, s51')
    e('s_lshl_b32 s50, s50, 17')
    e(f's_add_u32 s{sOs}, s8, s50')
    e(f's_addc_u32 s{sOs + 1}, s9, 0')
    e(f's_mov_b32 s{sOs + 2}, {4 * 131072}')
    e(f's_mov_b32 s{sOs + 3}, 0x20000')
    e('s_lshl_b32 s50, s47, 7')
    e(f's_add_u32 s{sWo}, s4, s50')
    e(f's_addc_u32 s{sWo + 1}, s5, 0')
    e(f's_sub_u32 s{sWo + 2}, 0x400000, s50')
    e(f's_mov_b32 s{sWo + 3}, 0x20000')
    e('s_lshl_b32 s50, s48, 17')
    e('s_lshl_b32 s51, s45, 10')
    e('s_add_u32 s50, s50, s51')
    e('s_lshl_b32 s51, s47, 7')
    e('s_add_u32 s50, s50, s51')
    e(f's_add_u32 s{sD}, s6, s50')
    e(f's_addc_u32 s{sD + 1}, s7, 0')
    e(f's_sub_u32 s{sD + 2}, {896 * 2048}, s50')
    e(f's_mov_b32 s{sD + 3}, 0x20000')

    def issue(kk):
        st = kk % D
        e(f's_add_u32 m0, s{sM0}, {st * 4096}')
        e(f's_mov_b32 s{sT}, {kk * 32768}')
        e(f's_mov_b32 s{sT2}, {kk * 32768 + 16384 - 2048}')
        for m in range(4):
            so = sT if m < 2 else sT2
            e(f'buffer_load_dwordx4 v{DW + (m & 1)}, s[{sWo}:{sWo + 3}], s{so} offen offset:{m * 1024} lds', tag=('wo', kk))
        for qq in range(4):
            e(f's_mov_b32 s{sT}, {qq * 131072 + (kk >> 2) * 4096}')
            e(f'buffer_load_dwordx4 {v(OF + st * 16 + qq * 4, 4)}, v{VO}, s[{sOs}:{sOs + 3}], s{sT} offen offset:{(kk & 3) * 1024}')

    def reads(kk):
        st = kk % D
        out = []
        for ee in range(2):
            for t in range(2):
                fr = AF + (kk & 1) * 16 + (ee * 2 + t) * 4
                out += [f'ds_read_b64_tr_b16 {v(fr, 2)}, v{TA + 2 * ee + t} offset:{st * 4096}',
                        f'ds_read_b64_tr_b16 {v(fr + 2, 2)}, v{TA + 2 * ee + t} offset:{st * 4096 + 512}']
        return out

    for kk in range(D):
        issue(kk)
    P.wait_tag(('wo', 0))
    for x in reads(0):
        e(x)
    for kk in range(16):
        st = kk % D
        if kk + 1 < 16:
            P.wait_tag(('wo', kk + 1))
            for x in reads(kk + 1):
                e(x)
        for ee in range(2):
            for t in range(2):
                fr = AF + (kk & 1) * 16 + (ee * 2 + t) * 4
                for qq in range(4):
                    a = acc(qq, ee, t)
                    c = '0' if kk == 0 else v(a, 4)
                    e(f'{MFMA} {v(a, 4)}, {v(fr, 4)}, {v(OF + st * 16 + qq * 4, 4)}, {c}')
        if kk + D < 16:
            issue(kk + D)
    e('s_barrier')
    e(f'v_lshlrev_b32 v{TA}, 3, v{VR}')
    e(f'v_and_b32 v{TA + 1}, 0x3ff, v{VR}')
    e(f'v_and_b32 v{TA}, 0xffffc000, v{TA}')
    e(f'v_or_b32 v{TA}, v{TA}, v{TA + 1}')
    for tl in range(16):
        e(f'ds_write_b128 v{TA}, {v(ACC + tl * 4, 4)} offset:{tl * 1024}')
    P.wait_lgkm(0)
    e('s_barrier')
    RB = 64
    e(f'v_add_u32 v{TA + 2}, 65536, v{VR}')
    for p in range(8):
        for t in range(2):
            a = VR if p < 4 else TA + 2
            e(f'ds_read_b128 {v(RB + (p * 2 + t) * 4, 4)}, v{a} offset:{(p & 3) * 16384 + t * 1024}')
    for p in range(1, 8):
        for k in range(8):
            e(f'v_add_f32 v{RB + k}, v{RB + k}, v{RB + p * 8 + k}')
    o0, o1 = RB, RB + 4
    for x in [f'v_cvt_pk_bf16_f32 v{o0}, v{o0}, v{o0 + 1}',
              f'v_cvt_pk_bf16_f32 v{o0 + 1}, v{o0 + 2}, v{o0 + 3}',
              f'v_cvt_pk_bf16_f32 v{o0 + 2}, v{o1}, v{o1 + 1}',
              f'v_cvt_pk_bf16_f32 v{o0 + 3}, v{o1 + 2}, v{o1 + 3}',
              f'v_cndmask_b32_e64 v{o1}, v{o0}, v{o0 + 2}, s[{sMK}:{sMK + 1}]',
              f'v_cndmask_b32_e64 v{o1 + 1}, v{o0 + 1}, v{o0 + 3}, s[{sMK}:{sMK + 1}]',
              f'v_cndmask_b32_e64 v{o1 + 2}, v{o0 + 2}, v{o0}, s[{sMK}:{sMK + 1}]',
              f'v_cndmask_b32_e64 v{o1 + 3}, v{o0 + 3}, v{o0 + 1}, s[{sMK}:{sMK + 1}]',
              f'buffer_store_dwordx4 {v(o1, 4)}, v{VS}, s[{sD}:{sD + 3}], 0 offen']:
        e(x)
    if CFG['prof'] == 2:
        P.raw('  s_waitcnt vmcnt(0)')
        P.raw('  s_barrier')
        P.raw('  s_memrealtime s[72:73]')
        P.raw('  s_waitcnt lgkmcnt(0)')
        P.raw(f'  s_cmp_lg_u32 s{sWV}, 0')
        P.raw('  s_cbranch_scc1 L_k2_done')
        P.raw('  s_mov_b32 s66, 256')
        P.raw('  s_mov_b32 s67, 0x20000')
        P.raw('  s_not_b32 s70, s70')
        P.raw('  v_mov_b32 v14, s70')
        P.raw('  v_mov_b32 v15, s72')
        P.raw('  v_mov_b32 v16, 0')
        P.raw('  s_mov_b64 exec, 1')
        P.raw('  buffer_atomic_umax v14, v16, s[64:67], 0 offen offset:8')
        P.raw('  buffer_atomic_umax v15, v16, s[64:67], 0 offen offset:12')
        P.raw('  s_mov_b64 exec, -1')
        P.raw('  s_cmp_lg_u32 s2, 0')
        P.raw('  s_cbranch_scc1 L_k2_done')
        P.raw('  s_add_u32 s76, s8, 0x4000000')
        P.raw('  s_addc_u32 s77, s9, 0')
        P.raw('  s_mov_b32 s78, 0x40000')
        P.raw('  s_mov_b32 s79, 0x20000')
        P.raw('  v_lshlrev_b32 v17, 10, v201')
        for q in range(4):
            P.raw(f'  s_mov_b32 s50, {q * 65536}')
            P.raw(f'  buffer_load_dwordx4 v[20:23], v17, s[76:79], s50 offen offset:512')
            P.raw('  s_waitcnt vmcnt(0)')
            P.raw('  v_not_b32 v20, v20')
            P.raw('  buffer_atomic_umax v20, v16, s[64:67], 0 offen')
            P.raw('  buffer_atomic_umax v22, v16, s[64:67], 0 offen offset:4')
            P.raw('  s_waitcnt vmcnt(0)')
        P.raw('  v_lshlrev_b32 v17, 4, v201')
        P.raw('  buffer_load_dword v20, v17, s[76:79], 0 offen')
        P.raw('  buffer_load_dword v21, v16, s[76:79], 0 offen offset:516')
        P.raw('  s_waitcnt vmcnt(0)')
        P.raw('  v_sub_u32 v20, v20, v21')
        P.raw('  v_lshlrev_b32 v17, 2, v201')
        P.raw('  s_mov_b64 exec, 0x7ff')
        P.raw('  buffer_store_dword v20, v17, s[64:67], 0 offen offset:16')
    if CFG['spin2']:
        P.raw('  s_cmp_lg_u32 s2, 0')
        P.raw('  s_cbranch_scc1 L_k2_done')
        P.raw(f'  s_cmp_lg_u32 s{sWV}, 0')
        P.raw('  s_cbranch_scc1 L_k2_done')
        P.label('L_k2_spin')
        P.raw('  s_memrealtime s[72:73]')
        P.raw('  s_waitcnt lgkmcnt(0)')
        P.raw('  s_sub_u32 s72, s72, s70')
        P.raw(f'  s_cmp_lt_u32 s72, {CFG["spin2"]}')
        P.raw('  s_cbranch_scc1 L_k2_spin')
    P.label('L_k2_done')
    e('s_endpgm')
    return P.text()


HEADER = open('cdna_kernels/' + NAME + '.s.ref').read().split('; Override launch')[0]


def desc(name):
    return f'''.p2align 6
.amdhsa_kernel {name}
  .amdhsa_next_free_vgpr 256
  .amdhsa_next_free_sgpr 102
  .amdhsa_accum_offset 256
  .amdhsa_group_segment_fixed_size 0
  .amdhsa_kernarg_size 104
  .amdhsa_user_sgpr_count 2
  .amdhsa_user_sgpr_kernarg_segment_ptr 1
  .amdhsa_system_sgpr_workgroup_id_x 1
.end_amdhsa_kernel
'''


def main():
    out = HEADER
    out += '; @launch kernel=attn_kernel grid=(256,1,1) block=(512,1,1) lds=163840\n'
    out += '; @launch kernel=oproj_kernel grid=(224,1,1) block=(512,1,1) lds=163840\n'
    for i in range(CFG['extra']):
        out += '; @launch kernel=nop_kernel grid=(1,1,1) block=(64,1,1) lds=0\n'
    out += '.amdgcn_target "amdgcn-amd-amdhsa--gfx950"\n.text\n.globl attn_kernel\n.globl oproj_kernel\n'
    out += gen_k1() + gen_k2()
    if CFG['extra']:
        out += '.globl nop_kernel\n.p2align 8\n.type nop_kernel,@function\nnop_kernel:\n  s_endpgm\n'
    out += '.section .rodata,"a"\n' + desc('attn_kernel') + desc('oproj_kernel') + (desc('nop_kernel') if CFG['extra'] else '')
    path = sys.argv[1] if len(sys.argv) > 1 else 'cdna_kernels/' + NAME + '.s'
    open(path, 'w').write(out)
    import subprocess
    r = subprocess.run(['clang', '-x', 'assembler', '-target', 'amdgcn-amd-amdhsa', '-mcpu=gfx950', '-c', path, '-o', 'chk.o'], capture_output=True, text=True)
    print('wrote', path, len(out), 'bytes', 'ASM OK' if r.returncode == 0 else 'ASM FAIL\n' + r.stderr[:600])


main()
```

```python
import sys, os
sys.path.insert(0, os.path.dirname(__file__))
from asmlib import Prog, Ins, v, s, merge

NAME = 'concat_heads__mha_block_cached__gqa_block_cached__near_ridge'
CFG = dict(R=8, interleave=True, store_mod='', kv_mod='', k2_depth=5, prof=0, spin1=0, spin2=0, spin1c=0, extra=0, xb=3, pf=0, pf_mod='', early='-1,0,1,4,4,5,6,7,8,9', D1=7, D2=5, Dsw=18)
for a in sys.argv[2:]:
    k_, v_ = a.split('=')
    CFG[k_] = type(CFG[k_])(int(v_)) if not isinstance(CFG[k_], str) else v_.replace('+', ' ')

MFMA = 'v_mfma_f32_16x16x32_bf16'
SCALE_C = 128 ** -0.5 * 1.4426950408889634
import struct
def f32hex(x):
    return '0x%08x' % struct.unpack('<I', struct.pack('<f', x))[0]

sX, sK, sV, sW, sO = 16, 20, 24, 28, 32
sWAVE, sM0B, sSOFF, sXIT, sC, sOIT, sMASK = 36, 37, 38, 39, 40, 41, 42
S0 = 0
QO = 128
FR = 192
LACC = 224
ONES = 228
KADDR = 232
VADDR = 236
DK = 244
DV = 246
DWQ = 248
VM = 250
VT = 251
VMC = 252
VOFF = 253
VLOW = 254
VT2 = 255


def Qf(it, ks):
    return QO + 8 * (4 * it + ks)


def Oacc(e, t):
    return QO + 8 * (2 * e + t) + 4


def gen_k1():
    R = CFG['R']
    kvmod = (' ' + CFG['kv_mod']) if CFG['kv_mod'] else ''
    XB = CFG['xb']
    P = Prog()
    e = P.emit
    P.raw('.p2align 8')
    P.raw('.type attn_kernel,@function')
    P.label('attn_kernel')
    e('s_cmp_ge_u32 s2, 256')
    e('s_cbranch_scc1 L_k1_done')
    e('s_and_b32 s3, s2, 7')
    e('s_lshr_b32 s44, s2, 3')
    e('s_lshr_b32 s45, s3, 2')
    e('s_mul_i32 s46, s45, 40')
    e('s_load_dwordx8 s[4:11], s[0:1], s46')
    e('s_load_dwordx2 s[12:13], s[0:1], 96')
    e('s_and_b32 s47, s3, 3')
    e('s_lshl_b32 s47, s47, 3')
    e('s_lshr_b32 s48, s44, 2')
    e('s_add_u32 s47, s47, s48')
    e('s_and_b32 s48, s44, 3')
    e('v_lshrrev_b32 v1, 6, v0')
    e('v_and_b32 v2, 63, v0')
    e(f'v_readfirstlane_b32 s{sWAVE}, v1')
    e('v_lshrrev_b32 v3, 4, v2')
    e('v_and_b32 v4, 15, v2')
    e('v_bfe_u32 v5, v2, 2, 2')
    e('v_and_b32 v6, 3, v2')
    e(f's_lshl_b32 s{sM0B}, s{sWAVE}, 11')
    e(f's_and_b32 s49, s{sWAVE}, 1')
    e('v_and_b32 v7, 1, v3')
    e('v_lshrrev_b32 v8, 1, v3')
    e('v_lshl_or_b32 v7, v8, 2, v7')
    e('s_lshl_b32 s50, s49, 3')
    e('v_or_b32 v8, s50, v7')
    e('v_xor_b32 v8, v8, v4')
    e('v_lshlrev_b32 v8, 4, v8')
    e(f's_lshl_b32 s50, s{sWAVE}, 3')
    e('v_add_u32 v9, s50, v3')
    e(f'v_lshl_add_u32 v{DWQ}, v9, 13, v8')
    e(f'v_add_u32 v{DWQ + 1}, {4 * 8192 - 1024}, v{DWQ}')
    e('v_lshlrev_b32 v9, 8, v3')
    e(f'v_add_u32 v9, s{sM0B}, v9')
    e('v_xor_b32 v8, v7, v4')
    e(f'v_lshl_add_u32 v{DV}, v8, 4, v9')
    e('v_xor_b32 v8, 8, v8')
    e(f'v_lshl_add_u32 v{DV + 1}, v8, 4, v9')
    e('s_lshl_b32 s50, s49, 2')
    e('v_xor_b32 v8, s50, v3')
    e('v_lshlrev_b32 v8, 1, v8')
    e('v_or_b32 v8, s49, v8')
    e('v_xor_b32 v8, v8, v4')
    e(f'v_lshl_add_u32 v{DK}, v8, 4, v9')
    e('v_xor_b32 v8, 8, v8')
    e(f'v_lshl_add_u32 v{DK + 1}, v8, 4, v9')
    e('s_waitcnt lgkmcnt(0)')
    e('s_lshl_b32 s50, s47, 8')
    e(f's_add_u32 s{sW}, s10, s50')
    e(f's_addc_u32 s{sW + 1}, s11, 0')
    e(f's_sub_u32 s{sW + 2}, 0x400000, s50')
    e(f's_mov_b32 s{sW + 3}, 0x20000')
    e('s_mul_i32 s50, s48, 114688')
    e(f's_add_u32 s{sX}, s4, s50')
    e(f's_addc_u32 s{sX + 1}, s5, 0')
    e(f's_mov_b32 s{sX + 2}, {5 * 114688}')
    e(f's_mov_b32 s{sX + 3}, 0x20000')
    e('s_lshl_b32 s50, s48, 5')
    e('s_add_u32 s50, s50, s47')
    e('s_lshl_b32 s50, s50, 17')
    e(f's_add_u32 s{sK}, s6, s50')
    e(f's_addc_u32 s{sK + 1}, s7, 0')
    e(f's_mov_b32 s{sK + 2}, {4 * 4194304 + 131072}')
    e(f's_mov_b32 s{sK + 3}, 0x20000')
    e(f's_add_u32 s{sV}, s8, s50')
    e(f's_addc_u32 s{sV + 1}, s9, 0')
    e(f's_mov_b32 s{sV + 2}, {4 * 4194304 + 131072}')
    e(f's_mov_b32 s{sV + 3}, 0x20000')
    e('s_lshl_b32 s50, s45, 3')
    e('s_add_u32 s50, s50, s48')
    e('s_mul_i32 s50, s50, 224')
    e('s_add_u32 s50, s50, s47')
    e('s_lshl_b32 s50, s50, 12')
    e(f's_add_u32 s{sO}, s12, s50')
    e(f's_addc_u32 s{sO + 1}, s13, 0')
    e(f's_mov_b32 s{sO + 2}, {4 * 7 * 131072 + 6 * 131072 + 4096}')
    e(f's_mov_b32 s{sO + 3}, 0x20000')
    e(f's_mov_b32 s{sXIT}, {4 * 114688}')
    e(f's_mov_b32 s{sOIT}, {4 * 7 * 131072}')
    e(f's_mov_b32 s{sC}, {f32hex(SCALE_C)}')

    SEQ = [4, 5, 6, 0, 1, 2, 3, 9, 7, 8]
    LW, LK, LV = 20, 24, 28

    def kvslot(n):
        return SEQ[n % 10]

    def dma_w(P, j):
        slot = 7 + (j % 3)
        for grp in range(4):
            P.emit(f's_mov_b32 m0, {slot * 16384 + grp * 4096}')
            P.emit(f's_mov_b32 s{sSOFF}, {j * 524288 + grp * 131072}')
            for c in range(4):
                P.emit(f'buffer_load_dwordx4 v{LW + c}, s[{sW}:{sW + 3}], s{sSOFF} offen offset:{c * 1024} lds', tag=('w', j))

    def dma_kv(P, n):
        it, isv, t = n >> 4, (n >> 3) & 1, n & 7
        slot = kvslot(n)
        srd = sV if isv else sK
        for grp in range(4):
            P.emit(f's_mov_b32 m0, {slot * 16384 + grp * 4096}')
            P.emit(f's_mov_b32 s{sSOFF}, {it * 4 * 4194304 + t * 16384 + grp * 4096}')
            for c in range(4):
                d = LV + (c & 1) if isv else LK + c
                P.emit(f'buffer_load_dwordx4 v{d}, s[{srd}:{srd + 3}], s{sSOFF} offen offset:{c * 1024}{kvmod} lds', tag=('kv', n))

    early = [int(x) for x in CFG['early'].split(',')]
    avail = [-1, -1, -1, 4, 4, 4, 4, 6, 7, 8] + [8 + n - 9 for n in range(10, 32)]
    sched = {}
    for n in range(32):
        g_ = early[n] if n < 10 else 8 + n - (CFG['D1'] if n < CFG['Dsw'] else CFG['D2'])
        g_ = max(g_, avail[n])
        if n:
            g_ = max(g_, prev_g)
        prev_g = g_
        assert g_ < 8 + n
        sched.setdefault(g_, []).append(n)

    e(f's_cmp_eq_u32 s{sWAVE}, 7')
    e('s_cbranch_scc1 L_k1_loader')

    XD = DK
    XA = LACC
    e(f's_lshl_b32 s50, s{sWAVE}, 4')
    e('v_lshlrev_b32 v9, 1, v3')
    e('v_xor_b32 v9, v9, v4')
    e('v_add_u32 v8, s50, v3')
    e('v_lshlrev_b32 v8, 10, v8')
    e('v_lshl_add_u32 v8, v9, 4, v8')
    def ff(i):
        return (((i & 7) ^ ((i >> 3) << 2)) << 1) | (i >> 3)
    for p_ in range(4):
        e(f'v_xor_b32 v{XD + p_}, {ff(4 * p_) * 16}, v8')
    sXM = 51
    e(f's_lshl_b32 s{sXM}, s{sWAVE}, 13')

    def xdma(r):
        for it in range(2):
            for p_ in range(4):
                e(f's_add_u32 m0, s{sXM}, {it * 4096 + p_ * 1024}')
                e(f's_mov_b32 s{sSOFF}, {it * 4 * 114688 + p_ * 4096 + r * 256}')
                e(f'buffer_load_dwordx4 v{XD + p_}, s[{sX}:{sX + 3}], s{sSOFF} offen lds', tag=('x', r))
    xdma(0)
    e('v_and_b32 v8, 1, v5')
    e('v_lshrrev_b32 v9, 1, v5')
    e('v_lshl_or_b32 v8, v9, 2, v8')
    e('v_and_b32 v9, 1, v3')
    e('v_lshl_or_b32 v8, v9, 3, v8')
    e('v_xor_b32 v8, v8, v6')
    e('v_lshlrev_b32 v8, 4, v8')
    e('v_and_b32 v10, 1, v6')
    e('v_lshl_or_b32 v8, v10, 3, v8')
    e(f'v_cmp_eq_u32_e64 s[{sMASK}:{sMASK + 1}], 1, v9')
    e('v_lshl_add_u32 v10, v3, 3, v5')
    e('v_lshl_add_u32 v10, v10, 8, v8')
    e('v_add_u32 v10, 114688, v10')
    for ks in range(4):
        for t in range(2):
            e(f'v_xor_b32 v{VADDR + 2 * ks + t}, {64 * ks + 8 * t}, v10')
    e('v_lshl_add_u32 v10, v3, 2, v5')
    e(f'v_lshl_add_u32 v{VLOW}, v10, 8, v8')
    e('v_lshrrev_b32 v9, 3, v4')
    e('v_and_b32 v10, 7, v4')
    e('v_lshlrev_b32 v11, 2, v9')
    e('v_xor_b32 v10, v10, v11')
    e('v_lshl_or_b32 v10, v10, 1, v9')
    e('v_xor_b32 v10, v10, v3')
    e('v_lshlrev_b32 v10, 4, v10')
    e('v_lshl_add_u32 v10, v4, 8, v10')
    for ks in range(4):
        e(f'v_xor_b32 v{KADDR + ks}, {64 * ks}, v10')
        e(f'v_add_u32 v{XA + ks}, s{sXM}, v{KADDR + ks}')
    e(f's_lshl_b32 s50, s{sWAVE}, 17')
    e('v_lshlrev_b32 v9, 4, v2')
    e(f'v_add_u32 v{VT2}, s50, v9')
    for k in range(4):
        e(f'v_mov_b32 v{ONES + k}, 0x3f803f80')

    def xread(r):
        P.wait_tag(('x', r))
        for s_ in range(4):
            for it in range(2):
                dst = ((r * 4 + s_) * 2 + it) * 4
                e(f'ds_read_b128 {v(dst, 4)}, v{XA + s_} offset:{it * 4096}')
        P.wait_lgkm(0)
        if r < 3:
            xdma(r + 1)

    xread(0)

    for j in range(8):
        P.comment(f'W step {j}')
        e('s_barrier')
        if 1 <= j <= 3:
            xread(j)
        slot_off = (j % 3) * 16384
        seq = []
        for kk in range(2):
            for ks in range(4):
                for t in range(2):
                    idx = (kk * 8 + ks * 2 + t)
                    fr = FR + (idx % 8) * 4
                    a = VADDR + 2 * ks + t
                    off = slot_off + kk * 8192
                    rd = [f'ds_read_b64_tr_b16 {v(fr, 2)}, v{a} offset:{off}',
                          f'ds_read_b64_tr_b16 {v(fr + 2, 2)}, v{a} offset:{off + 1024}']
                    mm = []
                    for it in range(2):
                        acc = Qf(it, ks) + 4 * t
                        xb = ((2 * j + kk) * 2 + it) * 4
                        c = '0' if (j == 0 and kk == 0) else v(acc, 4)
                        mm.append(f'{MFMA} {v(acc, 4)}, {v(fr, 4)}, {v(xb, 4)}, {c}')
                    seq.append((rd, mm))
        AHEAD = 6
        for i in range(AHEAD):
            for x in seq[i][0]:
                e(x)
        for i in range(16):
            for x in seq[i][1]:
                e(x)
            if i + AHEAD < 16:
                for x in seq[i + AHEAD][0]:
                    e(x)
    qconv = []
    for it in range(2):
        for ks in range(4):
            q0, q1 = Qf(it, ks), Qf(it, ks) + 4
            qconv += [f'v_cvt_pk_bf16_f32 v{q1}, v{q1}, v{q1 + 1}',
                      f'v_cvt_pk_bf16_f32 v{q1 + 1}, v{q1 + 2}, v{q1 + 3}',
                      f'v_cvt_pk_bf16_f32 v{q1 + 2}, v{q0}, v{q0 + 1}',
                      f'v_cvt_pk_bf16_f32 v{q1 + 3}, v{q0 + 2}, v{q0 + 3}',
                      f'v_cndmask_b32_e64 v{q0}, v{q1 + 2}, v{q1}, s[{sMASK}:{sMASK + 1}]',
                      f'v_cndmask_b32_e64 v{q0 + 1}, v{q1 + 3}, v{q1 + 1}, s[{sMASK}:{sMASK + 1}]',
                      f'v_cndmask_b32_e64 v{q0 + 2}, v{q1}, v{q1 + 2}, s[{sMASK}:{sMASK + 1}]',
                      f'v_cndmask_b32_e64 v{q0 + 3}, v{q1 + 1}, v{q1 + 3}, s[{sMASK}:{sMASK + 1}]']
    for ee in range(4):
        for t in range(2):
            qconv.append(f'v_xor_b32 v{VADDR + 2 * ee + t}, {64 * ee + 8 * t}, v{VLOW}')
    qconv.append(f'v_mov_b32 v{VOFF}, v{VT2}')

    win = {'k': 0, 'v': 0}

    def set_window(which, slot):
        w = slot >> 2
        out = []
        if w != win[which]:
            d = (w - win[which]) * 65536
            regs = range(KADDR, KADDR + 4) if which == 'k' else range(VADDR, VADDR + 8)
            for r_ in regs:
                if d > 0:
                    out.append(f'v_add_u32 v{r_}, {d}, v{r_}')
                else:
                    out.append(f'v_subrev_u32 v{r_}, {-d}, v{r_}')
            win[which] = w
        return out

    def max_stream(t, first):
        b = S0 + t * 16
        out = []
        vals = list(range(b, b + 16))
        if first:
            out.append(f'v_max3_f32 v{VM}, v{vals[0]}, v{vals[1]}, v{vals[2]}')
            out.append(f'v_max_f32 v{VM}, v{VM}, v{vals[3]}')
            vals = vals[4:]
        for k in range(0, len(vals), 2):
            out.append(f'v_max3_f32 v{VM}, v{VM}, v{vals[k]}, v{vals[k + 1]}')
        return out

    def exp_stream(t):
        b = S0 + t * 16
        out = []
        for u in range(2):
            bb = b + 8 * u
            for k in range(8):
                out.append(f'v_fma_f32 v{bb + k}, v{bb + k}, s{sC}, -v{VMC}')
            for k in range(8):
                out.append(f'v_exp_f32 v{bb + k}, v{bb + k}')
            for k in range(4):
                out.append(f'v_cvt_pk_bf16_f32 v{bb + k}, v{bb + 2 * k}, v{bb + 2 * k + 1}')
        return out

    def epilogue(it):
        out = [f'v_rcp_f32 v{VT}, v{LACC}']
        so = f's{sOIT}' if it else '0'
        smod = (' ' + CFG['store_mod']) if CFG['store_mod'] else ''
        for ee in range(4):
            o0, o1 = Oacc(ee, 0), Oacc(ee, 1)
            for k in range(4):
                out.append(f'v_mul_f32 v{o0 + k}, v{o0 + k}, v{VT}')
            for k in range(4):
                out.append(f'v_mul_f32 v{o1 + k}, v{o1 + k}, v{VT}')
            out += [f'v_cvt_pk_bf16_f32 v{o0}, v{o0}, v{o0 + 1}',
                    f'v_cvt_pk_bf16_f32 v{o0 + 1}, v{o0 + 2}, v{o0 + 3}',
                    f'v_cvt_pk_bf16_f32 v{o0 + 2}, v{o1}, v{o1 + 1}',
                    f'v_cvt_pk_bf16_f32 v{o0 + 3}, v{o1 + 2}, v{o1 + 3}',
                    f'v_cndmask_b32_e64 v{o1}, v{o0}, v{o0 + 2}, s[{sMASK}:{sMASK + 1}]',
                    f'v_cndmask_b32_e64 v{o1 + 1}, v{o0 + 1}, v{o0 + 3}, s[{sMASK}:{sMASK + 1}]',
                    f'v_cndmask_b32_e64 v{o1 + 2}, v{o0 + 2}, v{o0}, s[{sMASK}:{sMASK + 1}]',
                    f'v_cndmask_b32_e64 v{o1 + 3}, v{o0 + 3}, v{o0 + 1}, s[{sMASK}:{sMASK + 1}]',
                    f'buffer_store_dwordx4 {v(o1, 4)}, v{VOFF}, s[{sO}:{sO + 3}], {so} offen offset:{ee * 1024}{smod}']
        return out

    pending = qconv
    for it in range(2):
        for t in range(8):
            n = it * 16 + t
            slot = kvslot(n)
            e('s_barrier')
            for x in pending:
                e(x)
            pending = []
            for x in set_window('k', slot):
                e(x)
            so = (slot & 3) * 16384
            rd, mm = [], []
            for kt in range(4):
                for ks in range(4):
                    idx = kt * 4 + ks
                    fr = FR + (idx % 8) * 4
                    rd.append(f'ds_read_b128 {v(fr, 4)}, v{KADDR + ks} offset:{so + kt * 4096}')
                    acc = S0 + t * 16 + kt * 4
                    c = '0' if ks == 0 else v(acc, 4)
                    mm.append(f'{MFMA} {v(acc, 4)}, {v(fr, 4)}, {v(Qf(it, ks), 4)}, {c}')
            main = rd[:8]
            for i in range(16):
                main.append(mm[i])
                if i + 8 < 16:
                    main.append(rd[i + 8])
            side = max_stream(t - 1, t == 1) if t >= 1 else []
            for x in (rd[:8] + merge(main[8:], side)):
                e(x)
        for t in range(8):
            n = it * 16 + 8 + t
            slot = kvslot(n)
            e('s_barrier')
            for x in set_window('v', slot):
                e(x)
            so = (slot & 3) * 16384
            seq = []
            for u in range(2):
                pb = S0 + t * 16 + 8 * u
                for ee in range(4):
                    for tt in range(2):
                        idx = u * 8 + ee * 2 + tt
                        fr = FR + (idx % 8) * 4
                        a = VADDR + 2 * ee + tt
                        off = so + u * 8192
                        rd = [f'ds_read_b64_tr_b16 {v(fr, 2)}, v{a} offset:{off}',
                              f'ds_read_b64_tr_b16 {v(fr + 2, 2)}, v{a} offset:{off + 4096}']
                        acc = Oacc(ee, tt)
                        c = '0' if (t == 0 and u == 0) else v(acc, 4)
                        mm = [f'{MFMA} {v(acc, 4)}, {v(fr, 4)}, {v(pb, 4)}, {c}']
                        if ee == 3 and tt == 1:
                            c = '0' if (t == 0 and u == 0) else v(LACC, 4)
                            mm.append(f'{MFMA} {v(LACC, 4)}, {v(ONES, 4)}, {v(pb, 4)}, {c}')
                        seq.append((rd, mm))
            AHEAD = 6
            head = [x for i in range(AHEAD) for x in seq[i][0]]
            main = []
            for i in range(16):
                main += seq[i][1]
                if i + AHEAD < 16:
                    main += seq[i + AHEAD][0]
            for x in head:
                e(x)
            if t == 0:
                for x in max_stream(7, False):
                    e(x)
                e(f'v_mov_b32 v{VT}, v{VM}')
                e(f'v_permlane32_swap_b32 v{VM}, v{VT}')
                e(f'v_max_f32 v{VM}, v{VM}, v{VT}')
                e(f'v_mov_b32 v{VT}, v{VM}')
                e(f'v_permlane16_swap_b32 v{VM}, v{VT}')
                e(f'v_max_f32 v{VM}, v{VM}, v{VT}')
                e(f'v_mul_f32 v{VMC}, s{sC}, v{VM}')
                for x in exp_stream(0):
                    e(x)
                if not CFG['interleave']:
                    for tt in range(1, 8):
                        for x in exp_stream(tt):
                            e(x)
            side = exp_stream(t + 1) if (t < 7 and CFG['interleave']) else []
            for x in merge(main, side):
                e(x)
        pending = epilogue(it)
    for x in pending:
        e(x)
    if CFG['prof']:
        e('s_waitcnt vmcnt(0)')
        e('s_barrier')
    e('s_endpgm')

    L = Prog()
    L.label('L_k1_loader')
    def stamp(reg, idx, real=False):
        if CFG['prof']:
            L.raw('  s_memrealtime s[60:61]' if real else '  s_memtime s[60:61]')
            L.raw('  s_waitcnt lgkmcnt(0)')
            L.raw(f'  v_writelane_b32 v{reg}, s60, {idx}')
    stamp(12, 0, True)
    stamp(12, 1)
    if CFG['spin1'] or CFG['spin1c']:
        L.raw('  s_memrealtime s[70:71]' if CFG['spin1'] else '  s_memtime s[70:71]')
        L.raw('  s_waitcnt lgkmcnt(0)')
    le = L.emit
    for c in range(4):
        a_, m_ = c >> 1, c & 1
        le(f'v_xor_b32 v8, {a_ << 3}, v7')
        le('v_xor_b32 v8, v8, v4')
        le('v_lshlrev_b32 v8, 4, v8')
        le('v_lshl_add_u32 v8, v3, 13, v8')
        le(f'v_add_u32 v{LW + c}, {c * (32768 - 1024)}, v8')
    dma_w(L, 0)
    for c in range(4):
        a_, m_ = c >> 1, c & 1
        le(f'v_xor_b32 v8, {(4 * m_) ^ (4 * a_)}, v3')
        le(f'v_lshlrev_b32 v8, 1, v8')
        le(f'v_or_b32 v8, {a_}, v8')
        le('v_xor_b32 v8, v8, v4')
        le('v_lshlrev_b32 v8, 4, v8')
        le(f'v_lshl_add_u32 v{LK + c}, v3, 8, v8')
    for m_ in range(2):
        le(f'v_xor_b32 v8, {m_ << 3}, v7')
        le('v_xor_b32 v8, v8, v4')
        le('v_lshlrev_b32 v8, 4, v8')
        le(f'v_lshl_add_u32 v{LV + m_}, v3, 8, v8')
    dma_w(L, 1)
    dma_w(L, 2)
    for n in sched.get(-1, []):
        dma_kv(L, n)
    for j in range(8):
        L.wait_tag(('w', j))
        stamp(11, j)
        L.emit('s_barrier')
        stamp(10, j)
        if 1 <= j <= 5:
            dma_w(L, j + 2)
        for n in sched.get(j, []):
            dma_kv(L, n)
    for n in range(32):
        L.wait_tag(('kv', n))
        stamp(11, 8 + n)
        L.emit('s_barrier')
        stamp(10, 8 + n)
        for n2 in sched.get(8 + n, []):
            dma_kv(L, n2)
    if CFG['prof']:
        L.emit('s_barrier')
        stamp(10, 40)
        stamp(12, 2, True)
        stamp(12, 3)
        L.emit('s_lshl_b32 s50, s2, 10')
        L.emit('s_add_u32 s50, s50, 0x4000000')
        L.emit('s_add_u32 s64, s12, s50')
        L.emit('s_addc_u32 s65, s13, 0')
        L.emit('s_mov_b32 s66, 1024')
        L.emit('s_mov_b32 s67, 0x20000')
        L.emit('v_lshlrev_b32 v13, 2, v2')
        L.emit('buffer_store_dword v10, v13, s[64:67], 0 offen')
        L.emit('buffer_store_dword v11, v13, s[64:67], 0 offen offset:256')
        L.emit('buffer_store_dword v12, v13, s[64:67], 0 offen offset:512')
    if CFG['spin1'] or CFG['spin1c']:
        L.raw('  s_cmp_lg_u32 s2, 0')
        L.raw('  s_cbranch_scc1 L_k1_done')
        L.label('L_k1_spin')
        L.raw('  s_memrealtime s[72:73]' if CFG['spin1'] else '  s_memtime s[72:73]')
        L.raw('  s_waitcnt lgkmcnt(0)')
        L.raw('  s_sub_u32 s72, s72, s70')
        L.raw(f'  s_cmp_lt_u32 s72, {CFG["spin1"] or CFG["spin1c"]}')
        L.raw('  s_cbranch_scc1 L_k1_spin')
    L.label('L_k1_done')
    L.emit('s_endpgm')
    return P.text() + L.text()


def gen_k2():
    D = CFG['k2_depth']
    P = Prog()
    e = P.emit
    ACC = 0
    OF = 64
    AF = OF + D * 16
    TA = AF + 32
    DW = TA + 4
    VO = DW + 2
    VR = VO + 1
    VS = VR + 1
    sOs, sWo, sD = 16, 20, 24
    sWV, sM0, sT, sT2, sMK = 36, 37, 38, 39, 42

    def acc(qq, ee, t):
        return ACC + ((qq * 2 + ee) * 2 + t) * 4

    P.raw('.p2align 8')
    P.raw('.type oproj_kernel,@function')
    P.label('oproj_kernel')
    e('s_cmp_ge_u32 s2, 224')
    e('s_cbranch_scc1 L_k2_done')
    if CFG['spin2']:
        P.raw('  s_memrealtime s[70:71]')
    if CFG['prof'] == 2:
        P.raw('  s_memrealtime s[70:71]')
        P.raw('  s_load_dwordx2 s[64:65], s[0:1], 88')
    e('s_and_b32 s3, s2, 7')
    e('s_lshr_b32 s44, s2, 3')
    e('s_lshr_b32 s45, s3, 2')
    e('s_mul_i32 s46, s45, 40')
    e('s_add_u32 s46, s46, 32')
    e('s_load_dwordx2 s[4:5], s[0:1], s46')
    e('s_load_dwordx2 s[6:7], s[0:1], 80')
    e('s_load_dwordx2 s[8:9], s[0:1], 96')
    e('s_mul_i32 s47, s44, 37')
    e('s_lshr_b32 s47, s47, 8')
    e('s_mul_i32 s48, s47, 7')
    e('s_sub_u32 s48, s44, s48')
    e('s_bfe_u32 s49, s3, 0x10001')
    e('s_mul_i32 s49, s49, 7')
    e('s_add_u32 s48, s48, s49')
    e('s_and_b32 s49, s3, 1')
    e('s_lshl_b32 s49, s49, 2')
    e('s_add_u32 s47, s47, s49')
    t0 = 200
    e(f'v_lshrrev_b32 v{t0}, 6, v0')
    e(f'v_and_b32 v{t0 + 1}, 63, v0')
    e(f'v_readfirstlane_b32 s{sWV}, v{t0}')
    L_, G_, I_, R_, C_ = t0 + 1, t0 + 2, t0 + 3, t0 + 4, t0 + 5
    e(f'v_lshrrev_b32 v{G_}, 4, v{L_}')
    e(f'v_and_b32 v{I_}, 15, v{L_}')
    e(f'v_bfe_u32 v{R_}, v{L_}, 2, 2')
    e(f'v_and_b32 v{C_}, 3, v{L_}')
    e(f's_mul_i32 s{sM0}, s{sWV}, {D * 4096}')
    a_, b_, c_ = t0 + 6, t0 + 7, t0 + 8
    e(f's_lshl_b32 s50, s{sWV}, 14')
    e(f'v_lshlrev_b32 v{a_}, 4, v{L_}')
    e(f'v_add_u32 v{VO}, s50, v{a_}')
    e(f'v_lshrrev_b32 v{a_}, 3, v{L_}')
    e(f'v_bfe_u32 v{b_}, v{L_}, 4, 1')
    e(f'v_and_b32 v{c_}, 7, v{L_}')
    e(f'v_xor_b32 v{b_}, v{b_}, v{c_}')
    e(f'v_lshlrev_b32 v{b_}, 4, v{b_}')
    e(f'v_lshl_add_u32 v{a_}, v{a_}, 10, v{b_}')
    e(f's_lshl_b32 s50, s{sWV}, 19')
    e(f'v_add_u32 v{DW}, s50, v{a_}')
    e(f'v_xor_b32 v{DW + 1}, 64, v{DW}')
    e(f'v_add_u32 v{DW + 1}, {8192 - 1024}, v{DW + 1}')
    e(f'v_lshrrev_b32 v{a_}, 1, v{R_}')
    e(f'v_and_b32 v{b_}, 1, v{G_}')
    e(f'v_cmp_eq_u32_e64 s[{sMK}:{sMK + 1}], 1, v{b_}')
    e(f'v_lshl_or_b32 v{a_}, v{b_}, 2, v{a_}')
    e(f'v_xor_b32 v{a_}, v{a_}, v{C_}')
    e(f'v_lshlrev_b32 v{a_}, 4, v{a_}')
    e(f'v_and_b32 v{b_}, 1, v{C_}')
    e(f'v_lshl_or_b32 v{a_}, v{b_}, 3, v{a_}')
    e(f'v_lshl_add_u32 v{b_}, v{G_}, 3, v{R_}')
    e(f'v_lshl_add_u32 v{a_}, v{b_}, 7, v{a_}')
    e(f'v_add_u32 v{a_}, s{sM0}, v{a_}')
    for ee in range(2):
        for t in range(2):
            e(f'v_xor_b32 v{TA + 2 * ee + t}, {64 * ee + 8 * t}, v{a_}')
    e(f'v_lshlrev_b32 v{a_}, 4, v{L_}')
    e(f's_lshl_b32 s50, s{sWV}, 11')
    e(f'v_add_u32 v{VR}, s50, v{a_}')
    e(f's_lshr_b32 s50, s{sWV}, 1')
    e('s_lshl_b32 s50, s50, 15')
    e(f's_and_b32 s51, s{sWV}, 1')
    e('s_lshl_b32 s51, s51, 6')
    e('s_add_u32 s50, s50, s51')
    e(f'v_lshlrev_b32 v{a_}, 11, v{I_}')
    e(f'v_lshl_add_u32 v{a_}, v{G_}, 4, v{a_}')
    e(f'v_add_u32 v{VS}, s50, v{a_}')
    e('s_waitcnt lgkmcnt(0)')
    e('s_mul_i32 s50, s45, 56')
    e('s_lshl_b32 s51, s48, 2')
    e('s_add_u32 s50, s50, s51')
    e('s_lshl_b32 s50, s50, 17')
    e(f's_add_u32 s{sOs}, s8, s50')
    e(f's_addc_u32 s{sOs + 1}, s9, 0')
    e(f's_mov_b32 s{sOs + 2}, {4 * 131072}')
    e(f's_mov_b32 s{sOs + 3}, 0x20000')
    e('s_lshl_b32 s50, s47, 7')
    e(f's_add_u32 s{sWo}, s4, s50')
    e(f's_addc_u32 s{sWo + 1}, s5, 0')
    e(f's_sub_u32 s{sWo + 2}, 0x400000, s50')
    e(f's_mov_b32 s{sWo + 3}, 0x20000')
    e('s_lshl_b32 s50, s48, 17')
    e('s_lshl_b32 s51, s45, 10')
    e('s_add_u32 s50, s50, s51')
    e('s_lshl_b32 s51, s47, 7')
    e('s_add_u32 s50, s50, s51')
    e(f's_add_u32 s{sD}, s6, s50')
    e(f's_addc_u32 s{sD + 1}, s7, 0')
    e(f's_sub_u32 s{sD + 2}, {896 * 2048}, s50')
    e(f's_mov_b32 s{sD + 3}, 0x20000')

    def issue(kk):
        st = kk % D
        e(f's_add_u32 m0, s{sM0}, {st * 4096}')
        e(f's_mov_b32 s{sT}, {kk * 32768}')
        e(f's_mov_b32 s{sT2}, {kk * 32768 + 16384 - 2048}')
        for m in range(4):
            so = sT if m < 2 else sT2
            e(f'buffer_load_dwordx4 v{DW + (m & 1)}, s[{sWo}:{sWo + 3}], s{so} offen offset:{m * 1024} lds', tag=('wo', kk))
        for qq in range(4):
            e(f's_mov_b32 s{sT}, {qq * 131072 + (kk >> 2) * 4096}')
            e(f'buffer_load_dwordx4 {v(OF + st * 16 + qq * 4, 4)}, v{VO}, s[{sOs}:{sOs + 3}], s{sT} offen offset:{(kk & 3) * 1024}')

    def reads(kk):
        st = kk % D
        out = []
        for ee in range(2):
            for t in range(2):
                fr = AF + (kk & 1) * 16 + (ee * 2 + t) * 4
                out += [f'ds_read_b64_tr_b16 {v(fr, 2)}, v{TA + 2 * ee + t} offset:{st * 4096}',
                        f'ds_read_b64_tr_b16 {v(fr + 2, 2)}, v{TA + 2 * ee + t} offset:{st * 4096 + 512}']
        return out

    for kk in range(D):
        issue(kk)
    P.wait_tag(('wo', 0))
    for x in reads(0):
        e(x)
    for kk in range(16):
        st = kk % D
        if kk + 1 < 16:
            P.wait_tag(('wo', kk + 1))
            for x in reads(kk + 1):
                e(x)
        for ee in range(2):
            for t in range(2):
                fr = AF + (kk & 1) * 16 + (ee * 2 + t) * 4
                for qq in range(4):
                    a = acc(qq, ee, t)
                    c = '0' if kk == 0 else v(a, 4)
                    e(f'{MFMA} {v(a, 4)}, {v(fr, 4)}, {v(OF + st * 16 + qq * 4, 4)}, {c}')
        if kk + D < 16:
            issue(kk + D)
    e('s_barrier')
    e(f'v_lshlrev_b32 v{TA}, 3, v{VR}')
    e(f'v_and_b32 v{TA + 1}, 0x3ff, v{VR}')
    e(f'v_and_b32 v{TA}, 0xffffc000, v{TA}')
    e(f'v_or_b32 v{TA}, v{TA}, v{TA + 1}')
    for tl in range(16):
        e(f'ds_write_b128 v{TA}, {v(ACC + tl * 4, 4)} offset:{tl * 1024}')
    P.wait_lgkm(0)
    e('s_barrier')
    RB = 64
    e(f'v_add_u32 v{TA + 2}, 65536, v{VR}')
    for p in range(8):
        for t in range(2):
            a = VR if p < 4 else TA + 2
            e(f'ds_read_b128 {v(RB + (p * 2 + t) * 4, 4)}, v{a} offset:{(p & 3) * 16384 + t * 1024}')
    for p in range(1, 8):
        for k in range(8):
            e(f'v_add_f32 v{RB + k}, v{RB + k}, v{RB + p * 8 + k}')
    o0, o1 = RB, RB + 4
    for x in [f'v_cvt_pk_bf16_f32 v{o0}, v{o0}, v{o0 + 1}',
              f'v_cvt_pk_bf16_f32 v{o0 + 1}, v{o0 + 2}, v{o0 + 3}',
              f'v_cvt_pk_bf16_f32 v{o0 + 2}, v{o1}, v{o1 + 1}',
              f'v_cvt_pk_bf16_f32 v{o0 + 3}, v{o1 + 2}, v{o1 + 3}',
              f'v_cndmask_b32_e64 v{o1}, v{o0}, v{o0 + 2}, s[{sMK}:{sMK + 1}]',
              f'v_cndmask_b32_e64 v{o1 + 1}, v{o0 + 1}, v{o0 + 3}, s[{sMK}:{sMK + 1}]',
              f'v_cndmask_b32_e64 v{o1 + 2}, v{o0 + 2}, v{o0}, s[{sMK}:{sMK + 1}]',
              f'v_cndmask_b32_e64 v{o1 + 3}, v{o0 + 3}, v{o0 + 1}, s[{sMK}:{sMK + 1}]',
              f'buffer_store_dwordx4 {v(o1, 4)}, v{VS}, s[{sD}:{sD + 3}], 0 offen']:
        e(x)
    if CFG['prof'] == 2:
        P.raw('  s_waitcnt vmcnt(0)')
        P.raw('  s_barrier')
        P.raw('  s_memrealtime s[72:73]')
        P.raw('  s_waitcnt lgkmcnt(0)')
        P.raw(f'  s_cmp_lg_u32 s{sWV}, 0')
        P.raw('  s_cbranch_scc1 L_k2_done')
        P.raw('  s_mov_b32 s66, 256')
        P.raw('  s_mov_b32 s67, 0x20000')
        P.raw('  s_not_b32 s70, s70')
        P.raw('  v_mov_b32 v14, s70')
        P.raw('  v_mov_b32 v15, s72')
        P.raw('  v_mov_b32 v16, 0')
        P.raw('  s_mov_b64 exec, 1')
        P.raw('  buffer_atomic_umax v14, v16, s[64:67], 0 offen offset:8')
        P.raw('  buffer_atomic_umax v15, v16, s[64:67], 0 offen offset:12')
        P.raw('  s_mov_b64 exec, -1')
        P.raw('  s_cmp_lg_u32 s2, 0')
        P.raw('  s_cbranch_scc1 L_k2_done')
        P.raw('  s_add_u32 s76, s8, 0x4000000')
        P.raw('  s_addc_u32 s77, s9, 0')
        P.raw('  s_mov_b32 s78, 0x40000')
        P.raw('  s_mov_b32 s79, 0x20000')
        P.raw('  v_lshlrev_b32 v17, 10, v201')
        for q in range(4):
            P.raw(f'  s_mov_b32 s50, {q * 65536}')
            P.raw(f'  buffer_load_dwordx4 v[20:23], v17, s[76:79], s50 offen offset:512')
            P.raw('  s_waitcnt vmcnt(0)')
            P.raw('  v_not_b32 v20, v20')
            P.raw('  buffer_atomic_umax v20, v16, s[64:67], 0 offen')
            P.raw('  buffer_atomic_umax v22, v16, s[64:67], 0 offen offset:4')
            P.raw('  s_waitcnt vmcnt(0)')
        P.raw('  v_lshlrev_b32 v17, 4, v201')
        P.raw('  buffer_load_dword v20, v17, s[76:79], 0 offen')
        P.raw('  buffer_load_dword v21, v16, s[76:79], 0 offen offset:516')
        P.raw('  s_waitcnt vmcnt(0)')
        P.raw('  v_sub_u32 v20, v20, v21')
        P.raw('  v_lshlrev_b32 v17, 2, v201')
        P.raw('  s_mov_b64 exec, 0x7ff')
        P.raw('  buffer_store_dword v20, v17, s[64:67], 0 offen offset:16')
    if CFG['spin2']:
        P.raw('  s_cmp_lg_u32 s2, 0')
        P.raw('  s_cbranch_scc1 L_k2_done')
        P.raw(f'  s_cmp_lg_u32 s{sWV}, 0')
        P.raw('  s_cbranch_scc1 L_k2_done')
        P.label('L_k2_spin')
        P.raw('  s_memrealtime s[72:73]')
        P.raw('  s_waitcnt lgkmcnt(0)')
        P.raw('  s_sub_u32 s72, s72, s70')
        P.raw(f'  s_cmp_lt_u32 s72, {CFG["spin2"]}')
        P.raw('  s_cbranch_scc1 L_k2_spin')
    P.label('L_k2_done')
    e('s_endpgm')
    return P.text()


HEADER = open('cdna_kernels/' + NAME + '.s.ref').read().split('; Override launch')[0]


def desc(name):
    return f'''.p2align 6
.amdhsa_kernel {name}
  .amdhsa_next_free_vgpr 256
  .amdhsa_next_free_sgpr 102
  .amdhsa_accum_offset 256
  .amdhsa_group_segment_fixed_size 0
  .amdhsa_kernarg_size 104
  .amdhsa_user_sgpr_count 2
  .amdhsa_user_sgpr_kernarg_segment_ptr 1
  .amdhsa_system_sgpr_workgroup_id_x 1
.end_amdhsa_kernel
'''


def main():
    out = HEADER
    out += '; @launch kernel=attn_kernel grid=(256,1,1) block=(512,1,1) lds=163840\n'
    out += '; @launch kernel=oproj_kernel grid=(224,1,1) block=(512,1,1) lds=163840\n'
    for i in range(CFG['extra']):
        out += '; @launch kernel=nop_kernel grid=(1,1,1) block=(64,1,1) lds=0\n'
    out += '.amdgcn_target "amdgcn-amd-amdhsa--gfx950"\n.text\n.globl attn_kernel\n.globl oproj_kernel\n'
    out += gen_k1() + gen_k2()
    if CFG['extra']:
        out += '.globl nop_kernel\n.p2align 8\n.type nop_kernel,@function\nnop_kernel:\n  s_endpgm\n'
    out += '.section .rodata,"a"\n' + desc('attn_kernel') + desc('oproj_kernel') + (desc('nop_kernel') if CFG['extra'] else '')
    path = sys.argv[1] if len(sys.argv) > 1 else 'cdna_kernels/' + NAME + '.s'
    open(path, 'w').write(out)
    import subprocess
    r = subprocess.run(['clang', '-x', 'assembler', '-target', 'amdgcn-amd-amdhsa', '-mcpu=gfx950', '-c', path, '-o', 'chk.o'], capture_output=True, text=True)
    print('wrote', path, len(out), 'bytes', 'ASM OK' if r.returncode == 0 else 'ASM FAIL\n' + r.stderr[:600])


main()
```

```python
import sys, os
sys.path.insert(0, os.path.dirname(__file__))
from asmlib import Prog, Ins, v, s, merge

NAME = 'concat_heads__mha_block_cached__gqa_block_cached__near_ridge'
CFG = dict(R=8, interleave=True, store_mod='', kv_mod='', k2_depth=5, prof=0, spin1=0, spin2=0, spin1c=0, extra=0, xb=3, pf=0, pf_mod='', early='-1,0,1,4,4,5,6,7,8,9', D1=7, D2=5, Dsw=18)
for a in sys.argv[2:]:
    k_, v_ = a.split('=')
    CFG[k_] = type(CFG[k_])(int(v_)) if not isinstance(CFG[k_], str) else v_.replace('+', ' ')

MFMA = 'v_mfma_f32_16x16x32_bf16'
SCALE_C = 128 ** -0.5 * 1.4426950408889634
import struct
def f32hex(x):
    return '0x%08x' % struct.unpack('<I', struct.pack('<f', x))[0]

sX, sK, sV, sW, sO = 16, 20, 24, 28, 32
sWAVE, sM0B, sSOFF, sXIT, sC, sOIT, sMASK = 36, 37, 38, 39, 40, 41, 42
S0 = 0
QO = 128
FR = 192
LACC = 224
ONES = 228
KADDR = 232
VADDR = 236
DK = 244
DV = 246
DWQ = 248
VM = 250
VT = 251
VMC = 252
VOFF = 253
VLOW = 254
VT2 = 255


def Qf(it, ks):
    return QO + 8 * (4 * it + ks)


def Oacc(e, t):
    return QO + 8 * (2 * e + t) + 4


def gen_k1():
    R = CFG['R']
    kvmod = (' ' + CFG['kv_mod']) if CFG['kv_mod'] else ''
    XB = CFG['xb']
    P = Prog()
    e = P.emit
    P.raw('.p2align 8')
    P.raw('.type attn_kernel,@function')
    P.label('attn_kernel')
    e('s_cmp_ge_u32 s2, 256')
    e('s_cbranch_scc1 L_k1_done')
    e('s_and_b32 s3, s2, 7')
    e('s_lshr_b32 s44, s2, 3')
    e('s_lshr_b32 s45, s3, 2')
    e('s_mul_i32 s46, s45, 40')
    e('s_load_dwordx8 s[4:11], s[0:1], s46')
    e('s_load_dwordx2 s[12:13], s[0:1], 96')
    e('s_add_u32 s46, s46, 32')
    e('s_load_dwordx2 s[14:15], s[0:1], s46')
    e('s_and_b32 s47, s3, 3')
    e('s_lshl_b32 s47, s47, 3')
    e('s_lshr_b32 s48, s44, 2')
    e('s_add_u32 s47, s47, s48')
    e('s_and_b32 s48, s44, 3')
    e('v_lshrrev_b32 v1, 6, v0')
    e('v_and_b32 v2, 63, v0')
    e(f'v_readfirstlane_b32 s{sWAVE}, v1')
    e('v_lshrrev_b32 v3, 4, v2')
    e('v_and_b32 v4, 15, v2')
    e('v_bfe_u32 v5, v2, 2, 2')
    e('v_and_b32 v6, 3, v2')
    e(f's_lshl_b32 s{sM0B}, s{sWAVE}, 11')
    e(f's_and_b32 s49, s{sWAVE}, 1')
    e('v_and_b32 v7, 1, v3')
    e('v_lshrrev_b32 v8, 1, v3')
    e('v_lshl_or_b32 v7, v8, 2, v7')
    e('s_lshl_b32 s50, s49, 3')
    e('v_or_b32 v8, s50, v7')
    e('v_xor_b32 v8, v8, v4')
    e('v_lshlrev_b32 v8, 4, v8')
    e(f's_lshl_b32 s50, s{sWAVE}, 3')
    e('v_add_u32 v9, s50, v3')
    e(f'v_lshl_add_u32 v{DWQ}, v9, 13, v8')
    e(f'v_add_u32 v{DWQ + 1}, {4 * 8192 - 1024}, v{DWQ}')
    e('v_lshlrev_b32 v9, 8, v3')
    e(f'v_add_u32 v9, s{sM0B}, v9')
    e('v_xor_b32 v8, v7, v4')
    e(f'v_lshl_add_u32 v{DV}, v8, 4, v9')
    e('v_xor_b32 v8, 8, v8')
    e(f'v_lshl_add_u32 v{DV + 1}, v8, 4, v9')
    e('s_lshl_b32 s50, s49, 2')
    e('v_xor_b32 v8, s50, v3')
    e('v_lshlrev_b32 v8, 1, v8')
    e('v_or_b32 v8, s49, v8')
    e('v_xor_b32 v8, v8, v4')
    e(f'v_lshl_add_u32 v{DK}, v8, 4, v9')
    e('v_xor_b32 v8, 8, v8')
    e(f'v_lshl_add_u32 v{DK + 1}, v8, 4, v9')
    e('s_waitcnt lgkmcnt(0)')
    e('s_lshl_b32 s50, s47, 8')
    e(f's_add_u32 s{sW}, s10, s50')
    e(f's_addc_u32 s{sW + 1}, s11, 0')
    e(f's_sub_u32 s{sW + 2}, 0x400000, s50')
    e(f's_mov_b32 s{sW + 3}, 0x20000')
    e('s_mul_i32 s50, s48, 114688')
    e(f's_add_u32 s{sX}, s4, s50')
    e(f's_addc_u32 s{sX + 1}, s5, 0')
    e(f's_mov_b32 s{sX + 2}, {5 * 114688}')
    e(f's_mov_b32 s{sX + 3}, 0x20000')
    e('s_lshl_b32 s50, s48, 5')
    e('s_add_u32 s50, s50, s47')
    e('s_lshl_b32 s50, s50, 17')
    e(f's_add_u32 s{sK}, s6, s50')
    e(f's_addc_u32 s{sK + 1}, s7, 0')
    e(f's_mov_b32 s{sK + 2}, {4 * 4194304 + 131072}')
    e(f's_mov_b32 s{sK + 3}, 0x20000')
    e(f's_add_u32 s{sV}, s8, s50')
    e(f's_addc_u32 s{sV + 1}, s9, 0')
    e(f's_mov_b32 s{sV + 2}, {4 * 4194304 + 131072}')
    e(f's_mov_b32 s{sV + 3}, 0x20000')
    e('s_lshl_b32 s50, s45, 3')
    e('s_add_u32 s50, s50, s48')
    e('s_mul_i32 s50, s50, 224')
    e('s_add_u32 s50, s50, s47')
    e('s_lshl_b32 s50, s50, 12')
    e(f's_add_u32 s{sO}, s12, s50')
    e(f's_addc_u32 s{sO + 1}, s13, 0')
    e(f's_mov_b32 s{sO + 2}, {4 * 7 * 131072 + 6 * 131072 + 4096}')
    e(f's_mov_b32 s{sO + 3}, 0x20000')
    e(f's_mov_b32 s{sXIT}, {4 * 114688}')
    e(f's_mov_b32 s{sOIT}, {4 * 7 * 131072}')
    e(f's_mov_b32 s{sC}, {f32hex(SCALE_C)}')

    SEQ = [4, 5, 6, 0, 1, 2, 3, 9, 7, 8]
    LW, LK, LV = 20, 24, 28

    def kvslot(n):
        return SEQ[n % 10]

    def dma_w(P, j):
        slot = 7 + (j % 3)
        for grp in range(4):
            P.emit(f's_mov_b32 m0, {slot * 16384 + grp * 4096}')
            P.emit(f's_mov_b32 s{sSOFF}, {j * 524288 + grp * 131072}')
            for c in range(4):
                P.emit(f'buffer_load_dwordx4 v{LW + c}, s[{sW}:{sW + 3}], s{sSOFF} offen offset:{c * 1024} lds', tag=('w', j))

    def dma_kv(P, n):
        it, isv, t = n >> 4, (n >> 3) & 1, n & 7
        slot = kvslot(n)
        srd = sV if isv else sK
        for grp in range(4):
            P.emit(f's_mov_b32 m0, {slot * 16384 + grp * 4096}')
            P.emit(f's_mov_b32 s{sSOFF}, {it * 4 * 4194304 + t * 16384 + grp * 4096}')
            for c in range(4):
                d = LV + (c & 1) if isv else LK + c
                P.emit(f'buffer_load_dwordx4 v{d}, s[{srd}:{srd + 3}], s{sSOFF} offen offset:{c * 1024}{kvmod} lds', tag=('kv', n))

    early = [int(x) for x in CFG['early'].split(',')]
    avail = [-1, -1, -1, 4, 4, 4, 4, 6, 7, 8] + [8 + n - 9 for n in range(10, 32)]
    sched = {}
    for n in range(32):
        g_ = early[n] if n < 10 else 8 + n - (CFG['D1'] if n < CFG['Dsw'] else CFG['D2'])
        g_ = max(g_, avail[n])
        if n:
            g_ = max(g_, prev_g)
        prev_g = g_
        assert g_ < 8 + n
        sched.setdefault(g_, []).append(n)

    e(f's_cmp_eq_u32 s{sWAVE}, 7')
    e('s_cbranch_scc1 L_k1_loader')

    XD = DK
    XA = LACC
    e(f's_lshl_b32 s50, s{sWAVE}, 4')
    e('v_lshlrev_b32 v9, 1, v3')
    e('v_xor_b32 v9, v9, v4')
    e('v_add_u32 v8, s50, v3')
    e('v_lshlrev_b32 v8, 10, v8')
    e('v_lshl_add_u32 v8, v9, 4, v8')
    def ff(i):
        return (((i & 7) ^ ((i >> 3) << 2)) << 1) | (i >> 3)
    for p_ in range(4):
        e(f'v_xor_b32 v{XD + p_}, {ff(4 * p_) * 16}, v8')
    sXM = 51
    e(f's_lshl_b32 s{sXM}, s{sWAVE}, 13')

    def xdma(r):
        for it in range(2):
            for p_ in range(4):
                e(f's_add_u32 m0, s{sXM}, {it * 4096 + p_ * 1024}')
                e(f's_mov_b32 s{sSOFF}, {it * 4 * 114688 + p_ * 4096 + r * 256}')
                e(f'buffer_load_dwordx4 v{XD + p_}, s[{sX}:{sX + 3}], s{sSOFF} offen lds', tag=('x', r))
    xdma(0)
    e('v_and_b32 v8, 1, v5')
    e('v_lshrrev_b32 v9, 1, v5')
    e('v_lshl_or_b32 v8, v9, 2, v8')
    e('v_and_b32 v9, 1, v3')
    e('v_lshl_or_b32 v8, v9, 3, v8')
    e('v_xor_b32 v8, v8, v6')
    e('v_lshlrev_b32 v8, 4, v8')
    e('v_and_b32 v10, 1, v6')
    e('v_lshl_or_b32 v8, v10, 3, v8')
    e(f'v_cmp_eq_u32_e64 s[{sMASK}:{sMASK + 1}], 1, v9')
    e('v_lshl_add_u32 v10, v3, 3, v5')
    e('v_lshl_add_u32 v10, v10, 8, v8')
    e('v_add_u32 v10, 114688, v10')
    for ks in range(4):
        for t in range(2):
            e(f'v_xor_b32 v{VADDR + 2 * ks + t}, {64 * ks + 8 * t}, v10')
    e('v_lshl_add_u32 v10, v3, 2, v5')
    e(f'v_lshl_add_u32 v{VLOW}, v10, 8, v8')
    e('v_lshrrev_b32 v9, 3, v4')
    e('v_and_b32 v10, 7, v4')
    e('v_lshlrev_b32 v11, 2, v9')
    e('v_xor_b32 v10, v10, v11')
    e('v_lshl_or_b32 v10, v10, 1, v9')
    e('v_xor_b32 v10, v10, v3')
    e('v_lshlrev_b32 v10, 4, v10')
    e('v_lshl_add_u32 v10, v4, 8, v10')
    for ks in range(4):
        e(f'v_xor_b32 v{KADDR + ks}, {64 * ks}, v10')
        e(f'v_add_u32 v{XA + ks}, s{sXM}, v{KADDR + ks}')
    e(f's_lshl_b32 s50, s{sWAVE}, 17')
    e('v_lshlrev_b32 v9, 4, v2')
    e(f'v_add_u32 v{VT2}, s50, v9')
    for k in range(4):
        e(f'v_mov_b32 v{ONES + k}, 0x3f803f80')

    def xread(r):
        P.wait_tag(('x', r))
        for s_ in range(4):
            for it in range(2):
                dst = ((r * 4 + s_) * 2 + it) * 4
                e(f'ds_read_b128 {v(dst, 4)}, v{XA + s_} offset:{it * 4096}')
        P.wait_lgkm(0)
        if r < 3:
            xdma(r + 1)

    xread(0)

    for j in range(8):
        P.comment(f'W step {j}')
        e('s_barrier')
        if 1 <= j <= 3:
            xread(j)
        slot_off = (j % 3) * 16384
        seq = []
        for kk in range(2):
            for ks in range(4):
                for t in range(2):
                    idx = (kk * 8 + ks * 2 + t)
                    fr = FR + (idx % 8) * 4
                    a = VADDR + 2 * ks + t
                    off = slot_off + kk * 8192
                    rd = [f'ds_read_b64_tr_b16 {v(fr, 2)}, v{a} offset:{off}',
                          f'ds_read_b64_tr_b16 {v(fr + 2, 2)}, v{a} offset:{off + 1024}']
                    mm = []
                    for it in range(2):
                        acc = Qf(it, ks) + 4 * t
                        xb = ((2 * j + kk) * 2 + it) * 4
                        c = '0' if (j == 0 and kk == 0) else v(acc, 4)
                        mm.append(f'{MFMA} {v(acc, 4)}, {v(fr, 4)}, {v(xb, 4)}, {c}')
                    seq.append((rd, mm))
        AHEAD = 6
        for i in range(AHEAD):
            for x in seq[i][0]:
                e(x)
        for i in range(16):
            for x in seq[i][1]:
                e(x)
            if i + AHEAD < 16:
                for x in seq[i + AHEAD][0]:
                    e(x)
    qconv = []
    for it in range(2):
        for ks in range(4):
            q0, q1 = Qf(it, ks), Qf(it, ks) + 4
            qconv += [f'v_cvt_pk_bf16_f32 v{q1}, v{q1}, v{q1 + 1}',
                      f'v_cvt_pk_bf16_f32 v{q1 + 1}, v{q1 + 2}, v{q1 + 3}',
                      f'v_cvt_pk_bf16_f32 v{q1 + 2}, v{q0}, v{q0 + 1}',
                      f'v_cvt_pk_bf16_f32 v{q1 + 3}, v{q0 + 2}, v{q0 + 3}',
                      f'v_cndmask_b32_e64 v{q0}, v{q1 + 2}, v{q1}, s[{sMASK}:{sMASK + 1}]',
                      f'v_cndmask_b32_e64 v{q0 + 1}, v{q1 + 3}, v{q1 + 1}, s[{sMASK}:{sMASK + 1}]',
                      f'v_cndmask_b32_e64 v{q0 + 2}, v{q1}, v{q1 + 2}, s[{sMASK}:{sMASK + 1}]',
                      f'v_cndmask_b32_e64 v{q0 + 3}, v{q1 + 1}, v{q1 + 3}, s[{sMASK}:{sMASK + 1}]']
    for ee in range(4):
        for t in range(2):
            qconv.append(f'v_xor_b32 v{VADDR + 2 * ee + t}, {64 * ee + 8 * t}, v{VLOW}')
    qconv.append(f'v_mov_b32 v{VOFF}, v{VT2}')

    win = {'k': 0, 'v': 0}

    def set_window(which, slot):
        w = slot >> 2
        out = []
        if w != win[which]:
            d = (w - win[which]) * 65536
            regs = range(KADDR, KADDR + 4) if which == 'k' else range(VADDR, VADDR + 8)
            for r_ in regs:
                if d > 0:
                    out.append(f'v_add_u32 v{r_}, {d}, v{r_}')
                else:
                    out.append(f'v_subrev_u32 v{r_}, {-d}, v{r_}')
            win[which] = w
        return out

    def max_stream(t, first):
        b = S0 + t * 16
        out = []
        vals = list(range(b, b + 16))
        if first:
            out.append(f'v_max3_f32 v{VM}, v{vals[0]}, v{vals[1]}, v{vals[2]}')
            out.append(f'v_max_f32 v{VM}, v{VM}, v{vals[3]}')
            vals = vals[4:]
        for k in range(0, len(vals), 2):
            out.append(f'v_max3_f32 v{VM}, v{VM}, v{vals[k]}, v{vals[k + 1]}')
        return out

    def exp_stream(t):
        b = S0 + t * 16
        out = []
        for u in range(2):
            bb = b + 8 * u
            for k in range(8):
                out.append(f'v_fma_f32 v{bb + k}, v{bb + k}, s{sC}, -v{VMC}')
            for k in range(8):
                out.append(f'v_exp_f32 v{bb + k}, v{bb + k}')
            for k in range(4):
                out.append(f'v_cvt_pk_bf16_f32 v{bb + k}, v{bb + 2 * k}, v{bb + 2 * k + 1}')
        return out

    def epilogue(it):
        out = [f'v_rcp_f32 v{VT}, v{LACC}']
        so = f's{sOIT}' if it else '0'
        smod = (' ' + CFG['store_mod']) if CFG['store_mod'] else ''
        for ee in range(4):
            o0, o1 = Oacc(ee, 0), Oacc(ee, 1)
            for k in range(4):
                out.append(f'v_mul_f32 v{o0 + k}, v{o0 + k}, v{VT}')
            for k in range(4):
                out.append(f'v_mul_f32 v{o1 + k}, v{o1 + k}, v{VT}')
            out += [f'v_cvt_pk_bf16_f32 v{o0}, v{o0}, v{o0 + 1}',
                    f'v_cvt_pk_bf16_f32 v{o0 + 1}, v{o0 + 2}, v{o0 + 3}',
                    f'v_cvt_pk_bf16_f32 v{o0 + 2}, v{o1}, v{o1 + 1}',
                    f'v_cvt_pk_bf16_f32 v{o0 + 3}, v{o1 + 2}, v{o1 + 3}',
                    f'v_cndmask_b32_e64 v{o1}, v{o0}, v{o0 + 2}, s[{sMASK}:{sMASK + 1}]',
                    f'v_cndmask_b32_e64 v{o1 + 1}, v{o0 + 1}, v{o0 + 3}, s[{sMASK}:{sMASK + 1}]',
                    f'v_cndmask_b32_e64 v{o1 + 2}, v{o0 + 2}, v{o0}, s[{sMASK}:{sMASK + 1}]',
                    f'v_cndmask_b32_e64 v{o1 + 3}, v{o0 + 3}, v{o0 + 1}, s[{sMASK}:{sMASK + 1}]',
                    f'buffer_store_dwordx4 {v(o1, 4)}, v{VOFF}, s[{sO}:{sO + 3}], {so} offen offset:{ee * 1024}{smod}']
        return out

    pending = qconv
    for it in range(2):
        for t in range(8):
            n = it * 16 + t
            slot = kvslot(n)
            e('s_barrier')
            for x in pending:
                e(x)
            pending = []
            for x in set_window('k', slot):
                e(x)
            so = (slot & 3) * 16384
            rd, mm = [], []
            for kt in range(4):
                for ks in range(4):
                    idx = kt * 4 + ks
                    fr = FR + (idx % 8) * 4
                    rd.append(f'ds_read_b128 {v(fr, 4)}, v{KADDR + ks} offset:{so + kt * 4096}')
                    acc = S0 + t * 16 + kt * 4
                    c = '0' if ks == 0 else v(acc, 4)
                    mm.append(f'{MFMA} {v(acc, 4)}, {v(fr, 4)}, {v(Qf(it, ks), 4)}, {c}')
            main = rd[:8]
            for i in range(16):
                main.append(mm[i])
                if i + 8 < 16:
                    main.append(rd[i + 8])
            side = max_stream(t - 1, t == 1) if t >= 1 else []
            for x in (rd[:8] + merge(main[8:], side)):
                e(x)
        for t in range(8):
            n = it * 16 + 8 + t
            slot = kvslot(n)
            e('s_barrier')
            for x in set_window('v', slot):
                e(x)
            so = (slot & 3) * 16384
            seq = []
            for u in range(2):
                pb = S0 + t * 16 + 8 * u
                for ee in range(4):
                    for tt in range(2):
                        idx = u * 8 + ee * 2 + tt
                        fr = FR + (idx % 8) * 4
                        a = VADDR + 2 * ee + tt
                        off = so + u * 8192
                        rd = [f'ds_read_b64_tr_b16 {v(fr, 2)}, v{a} offset:{off}',
                              f'ds_read_b64_tr_b16 {v(fr + 2, 2)}, v{a} offset:{off + 4096}']
                        acc = Oacc(ee, tt)
                        c = '0' if (t == 0 and u == 0) else v(acc, 4)
                        mm = [f'{MFMA} {v(acc, 4)}, {v(fr, 4)}, {v(pb, 4)}, {c}']
                        if ee == 3 and tt == 1:
                            c = '0' if (t == 0 and u == 0) else v(LACC, 4)
                            mm.append(f'{MFMA} {v(LACC, 4)}, {v(ONES, 4)}, {v(pb, 4)}, {c}')
                        seq.append((rd, mm))
            AHEAD = 6
            head = [x for i in range(AHEAD) for x in seq[i][0]]
            main = []
            for i in range(16):
                main += seq[i][1]
                if i + AHEAD < 16:
                    main += seq[i + AHEAD][0]
            for x in head:
                e(x)
            if t == 0:
                for x in max_stream(7, False):
                    e(x)
                e(f'v_mov_b32 v{VT}, v{VM}')
                e(f'v_permlane32_swap_b32 v{VM}, v{VT}')
                e(f'v_max_f32 v{VM}, v{VM}, v{VT}')
                e(f'v_mov_b32 v{VT}, v{VM}')
                e(f'v_permlane16_swap_b32 v{VM}, v{VT}')
                e(f'v_max_f32 v{VM}, v{VM}, v{VT}')
                e(f'v_mul_f32 v{VMC}, s{sC}, v{VM}')
                for x in exp_stream(0):
                    e(x)
                if not CFG['interleave']:
                    for tt in range(1, 8):
                        for x in exp_stream(tt):
                            e(x)
            side = exp_stream(t + 1) if (t < 7 and CFG['interleave']) else []
            for x in merge(main, side):
                e(x)
        pending = epilogue(it)
    for x in pending:
        e(x)
    if CFG['prof']:
        e('s_waitcnt vmcnt(0)')
        e('s_barrier')
    e('s_endpgm')

    L = Prog()
    L.label('L_k1_loader')
    def stamp(reg, idx, real=False):
        if CFG['prof']:
            L.raw('  s_memrealtime s[60:61]' if real else '  s_memtime s[60:61]')
            L.raw('  s_waitcnt lgkmcnt(0)')
            L.raw(f'  v_writelane_b32 v{reg}, s60, {idx}')
    stamp(12, 0, True)
    stamp(12, 1)
    if CFG['spin1'] or CFG['spin1c']:
        L.raw('  s_memrealtime s[70:71]' if CFG['spin1'] else '  s_memtime s[70:71]')
        L.raw('  s_waitcnt lgkmcnt(0)')
    le = L.emit
    for c in range(4):
        a_, m_ = c >> 1, c & 1
        le(f'v_xor_b32 v8, {a_ << 3}, v7')
        le('v_xor_b32 v8, v8, v4')
        le('v_lshlrev_b32 v8, 4, v8')
        le('v_lshl_add_u32 v8, v3, 13, v8')
        le(f'v_add_u32 v{LW + c}, {c * (32768 - 1024)}, v8')
    dma_w(L, 0)
    for c in range(4):
        a_, m_ = c >> 1, c & 1
        le(f'v_xor_b32 v8, {(4 * m_) ^ (4 * a_)}, v3')
        le(f'v_lshlrev_b32 v8, 1, v8')
        le(f'v_or_b32 v8, {a_}, v8')
        le('v_xor_b32 v8, v8, v4')
        le('v_lshlrev_b32 v8, 4, v8')
        le(f'v_lshl_add_u32 v{LK + c}, v3, 8, v8')
    for m_ in range(2):
        le(f'v_xor_b32 v8, {m_ << 3}, v7')
        le('v_xor_b32 v8, v8, v4')
        le('v_lshlrev_b32 v8, 4, v8')
        le(f'v_lshl_add_u32 v{LV + m_}, v3, 8, v8')
    dma_w(L, 1)
    dma_w(L, 2)
    pf_done = 0
    pfmod = (' ' + CFG['pf_mod']) if CFG['pf_mod'] else ''
    if CFG['pf']:
        le('s_lshl_b32 s50, s47, 17')
        le('s_lshl_b32 s51, s48, 15')
        le('s_add_u32 s50, s50, s51')
        le('s_add_u32 s52, s14, s50')
        le('s_addc_u32 s53, s15, 0')
        le('s_mov_b32 s54, 32768')
        le('s_mov_b32 s55, 0x20000')
        le('v_lshlrev_b32 v32, 4, v2')
    for n in sched.get(-1, []):
        dma_kv(L, n)
    for j in range(8):
        L.wait_tag(('w', j))
        stamp(11, j)
        L.emit('s_barrier')
        stamp(10, j)
        if 1 <= j <= 5:
            dma_w(L, j + 2)
        for n in sched.get(j, []):
            dma_kv(L, n)
    for n in range(32):
        L.wait_tag(('kv', n))
        stamp(11, 8 + n)
        L.emit('s_barrier')
        stamp(10, 8 + n)
        for n2 in sched.get(8 + n, []):
            dma_kv(L, n2)
        if CFG['pf'] and n >= CFG['pf']:
            outst = sum(1 for k_, _, _ in L.vm if k_ == 'l') - 16
            cnt = max(0, min(32 - pf_done, 63 - outst)) if n < 31 else 32 - pf_done
            for q in range(pf_done, pf_done + cnt):
                if q % 4 == 0:
                    le(f's_mov_b32 s{sSOFF}, {q * 1024}')
                le(f'buffer_load_dwordx4 {v(64 + q * 4, 4)}, v32, s[52:55], s{sSOFF} offen offset:{(q % 4) * 1024}{pfmod}')
            pf_done += cnt
    if CFG['pf']:
        L.wait_vm_all()
    if CFG['prof']:
        L.emit('s_barrier')
        stamp(10, 40)
        stamp(12, 2, True)
        stamp(12, 3)
        L.emit('s_lshl_b32 s50, s2, 10')
        L.emit('s_add_u32 s50, s50, 0x4000000')
        L.emit('s_add_u32 s64, s12, s50')
        L.emit('s_addc_u32 s65, s13, 0')
        L.emit('s_mov_b32 s66, 1024')
        L.emit('s_mov_b32 s67, 0x20000')
        L.emit('v_lshlrev_b32 v13, 2, v2')
        L.emit('buffer_store_dword v10, v13, s[64:67], 0 offen')
        L.emit('buffer_store_dword v11, v13, s[64:67], 0 offen offset:256')
        L.emit('buffer_store_dword v12, v13, s[64:67], 0 offen offset:512')
    if CFG['spin1'] or CFG['spin1c']:
        L.raw('  s_cmp_lg_u32 s2, 0')
        L.raw('  s_cbranch_scc1 L_k1_done')
        L.label('L_k1_spin')
        L.raw('  s_memrealtime s[72:73]' if CFG['spin1'] else '  s_memtime s[72:73]')
        L.raw('  s_waitcnt lgkmcnt(0)')
        L.raw('  s_sub_u32 s72, s72, s70')
        L.raw(f'  s_cmp_lt_u32 s72, {CFG["spin1"] or CFG["spin1c"]}')
        L.raw('  s_cbranch_scc1 L_k1_spin')
    L.label('L_k1_done')
    L.emit('s_endpgm')
    return P.text() + L.text()


def gen_k2():
    D = CFG['k2_depth']
    P = Prog()
    e = P.emit
    ACC = 0
    OF = 64
    AF = OF + D * 16
    TA = AF + 32
    DW = TA + 4
    VO = DW + 2
    VR = VO + 1
    VS = VR + 1
    sOs, sWo, sD = 16, 20, 24
    sWV, sM0, sT, sT2, sMK = 36, 37, 38, 39, 42

    def acc(qq, ee, t):
        return ACC + ((qq * 2 + ee) * 2 + t) * 4

    P.raw('.p2align 8')
    P.raw('.type oproj_kernel,@function')
    P.label('oproj_kernel')
    e('s_cmp_ge_u32 s2, 224')
    e('s_cbranch_scc1 L_k2_done')
    if CFG['spin2']:
        P.raw('  s_memrealtime s[70:71]')
    if CFG['prof'] == 2:
        P.raw('  s_memrealtime s[70:71]')
        P.raw('  s_load_dwordx2 s[64:65], s[0:1], 88')
    e('s_and_b32 s3, s2, 7')
    e('s_lshr_b32 s44, s2, 3')
    e('s_lshr_b32 s45, s3, 2')
    e('s_mul_i32 s46, s45, 40')
    e('s_add_u32 s46, s46, 32')
    e('s_load_dwordx2 s[4:5], s[0:1], s46')
    e('s_load_dwordx2 s[6:7], s[0:1], 80')
    e('s_load_dwordx2 s[8:9], s[0:1], 96')
    e('s_mul_i32 s47, s44, 37')
    e('s_lshr_b32 s47, s47, 8')
    e('s_mul_i32 s48, s47, 7')
    e('s_sub_u32 s48, s44, s48')
    e('s_bfe_u32 s49, s3, 0x10001')
    e('s_mul_i32 s49, s49, 7')
    e('s_add_u32 s48, s48, s49')
    e('s_and_b32 s49, s3, 1')
    e('s_lshl_b32 s49, s49, 2')
    e('s_add_u32 s47, s47, s49')
    t0 = 200
    e(f'v_lshrrev_b32 v{t0}, 6, v0')
    e(f'v_and_b32 v{t0 + 1}, 63, v0')
    e(f'v_readfirstlane_b32 s{sWV}, v{t0}')
    L_, G_, I_, R_, C_ = t0 + 1, t0 + 2, t0 + 3, t0 + 4, t0 + 5
    e(f'v_lshrrev_b32 v{G_}, 4, v{L_}')
    e(f'v_and_b32 v{I_}, 15, v{L_}')
    e(f'v_bfe_u32 v{R_}, v{L_}, 2, 2')
    e(f'v_and_b32 v{C_}, 3, v{L_}')
    e(f's_mul_i32 s{sM0}, s{sWV}, {D * 4096}')
    a_, b_, c_ = t0 + 6, t0 + 7, t0 + 8
    e(f's_lshl_b32 s50, s{sWV}, 14')
    e(f'v_lshlrev_b32 v{a_}, 4, v{L_}')
    e(f'v_add_u32 v{VO}, s50, v{a_}')
    e(f'v_lshrrev_b32 v{a_}, 3, v{L_}')
    e(f'v_bfe_u32 v{b_}, v{L_}, 4, 1')
    e(f'v_and_b32 v{c_}, 7, v{L_}')
    e(f'v_xor_b32 v{b_}, v{b_}, v{c_}')
    e(f'v_lshlrev_b32 v{b_}, 4, v{b_}')
    e(f'v_lshl_add_u32 v{a_}, v{a_}, 10, v{b_}')
    e(f's_lshl_b32 s50, s{sWV}, 19')
    e(f'v_add_u32 v{DW}, s50, v{a_}')
    e(f'v_xor_b32 v{DW + 1}, 64, v{DW}')
    e(f'v_add_u32 v{DW + 1}, {8192 - 1024}, v{DW + 1}')
    e(f'v_lshrrev_b32 v{a_}, 1, v{R_}')
    e(f'v_and_b32 v{b_}, 1, v{G_}')
    e(f'v_cmp_eq_u32_e64 s[{sMK}:{sMK + 1}], 1, v{b_}')
    e(f'v_lshl_or_b32 v{a_}, v{b_}, 2, v{a_}')
    e(f'v_xor_b32 v{a_}, v{a_}, v{C_}')
    e(f'v_lshlrev_b32 v{a_}, 4, v{a_}')
    e(f'v_and_b32 v{b_}, 1, v{C_}')
    e(f'v_lshl_or_b32 v{a_}, v{b_}, 3, v{a_}')
    e(f'v_lshl_add_u32 v{b_}, v{G_}, 3, v{R_}')
    e(f'v_lshl_add_u32 v{a_}, v{b_}, 7, v{a_}')
    e(f'v_add_u32 v{a_}, s{sM0}, v{a_}')
    for ee in range(2):
        for t in range(2):
            e(f'v_xor_b32 v{TA + 2 * ee + t}, {64 * ee + 8 * t}, v{a_}')
    e(f'v_lshlrev_b32 v{a_}, 4, v{L_}')
    e(f's_lshl_b32 s50, s{sWV}, 11')
    e(f'v_add_u32 v{VR}, s50, v{a_}')
    e(f's_lshr_b32 s50, s{sWV}, 1')
    e('s_lshl_b32 s50, s50, 15')
    e(f's_and_b32 s51, s{sWV}, 1')
    e('s_lshl_b32 s51, s51, 6')
    e('s_add_u32 s50, s50, s51')
    e(f'v_lshlrev_b32 v{a_}, 11, v{I_}')
    e(f'v_lshl_add_u32 v{a_}, v{G_}, 4, v{a_}')
    e(f'v_add_u32 v{VS}, s50, v{a_}')
    e('s_waitcnt lgkmcnt(0)')
    e('s_mul_i32 s50, s45, 56')
    e('s_lshl_b32 s51, s48, 2')
    e('s_add_u32 s50, s50, s51')
    e('s_lshl_b32 s50, s50, 17')
    e(f's_add_u32 s{sOs}, s8, s50')
    e(f's_addc_u32 s{sOs + 1}, s9, 0')
    e(f's_mov_b32 s{sOs + 2}, {4 * 131072}')
    e(f's_mov_b32 s{sOs + 3}, 0x20000')
    e('s_lshl_b32 s50, s47, 7')
    e(f's_add_u32 s{sWo}, s4, s50')
    e(f's_addc_u32 s{sWo + 1}, s5, 0')
    e(f's_sub_u32 s{sWo + 2}, 0x400000, s50')
    e(f's_mov_b32 s{sWo + 3}, 0x20000')
    e('s_lshl_b32 s50, s48, 17')
    e('s_lshl_b32 s51, s45, 10')
    e('s_add_u32 s50, s50, s51')
    e('s_lshl_b32 s51, s47, 7')
    e('s_add_u32 s50, s50, s51')
    e(f's_add_u32 s{sD}, s6, s50')
    e(f's_addc_u32 s{sD + 1}, s7, 0')
    e(f's_sub_u32 s{sD + 2}, {896 * 2048}, s50')
    e(f's_mov_b32 s{sD + 3}, 0x20000')

    def issue(kk):
        st = kk % D
        e(f's_add_u32 m0, s{sM0}, {st * 4096}')
        e(f's_mov_b32 s{sT}, {kk * 32768}')
        e(f's_mov_b32 s{sT2}, {kk * 32768 + 16384 - 2048}')
        for m in range(4):
            so = sT if m < 2 else sT2
            e(f'buffer_load_dwordx4 v{DW + (m & 1)}, s[{sWo}:{sWo + 3}], s{so} offen offset:{m * 1024} lds', tag=('wo', kk))
        for qq in range(4):
            e(f's_mov_b32 s{sT}, {qq * 131072 + (kk >> 2) * 4096}')
            e(f'buffer_load_dwordx4 {v(OF + st * 16 + qq * 4, 4)}, v{VO}, s[{sOs}:{sOs + 3}], s{sT} offen offset:{(kk & 3) * 1024}')

    def reads(kk):
        st = kk % D
        out = []
        for ee in range(2):
            for t in range(2):
                fr = AF + (kk & 1) * 16 + (ee * 2 + t) * 4
                out += [f'ds_read_b64_tr_b16 {v(fr, 2)}, v{TA + 2 * ee + t} offset:{st * 4096}',
                        f'ds_read_b64_tr_b16 {v(fr + 2, 2)}, v{TA + 2 * ee + t} offset:{st * 4096 + 512}']
        return out

    for kk in range(D):
        issue(kk)
    P.wait_tag(('wo', 0))
    for x in reads(0):
        e(x)
    for kk in range(16):
        st = kk % D
        if kk + 1 < 16:
            P.wait_tag(('wo', kk + 1))
            for x in reads(kk + 1):
                e(x)
        for ee in range(2):
            for t in range(2):
                fr = AF + (kk & 1) * 16 + (ee * 2 + t) * 4
                for qq in range(4):
                    a = acc(qq, ee, t)
                    c = '0' if kk == 0 else v(a, 4)
                    e(f'{MFMA} {v(a, 4)}, {v(fr, 4)}, {v(OF + st * 16 + qq * 4, 4)}, {c}')
        if kk + D < 16:
            issue(kk + D)
    e('s_barrier')
    e(f'v_lshlrev_b32 v{TA}, 3, v{VR}')
    e(f'v_and_b32 v{TA + 1}, 0x3ff, v{VR}')
    e(f'v_and_b32 v{TA}, 0xffffc000, v{TA}')
    e(f'v_or_b32 v{TA}, v{TA}, v{TA + 1}')
    for tl in range(16):
        e(f'ds_write_b128 v{TA}, {v(ACC + tl * 4, 4)} offset:{tl * 1024}')
    P.wait_lgkm(0)
    e('s_barrier')
    RB = 64
    e(f'v_add_u32 v{TA + 2}, 65536, v{VR}')
    for p in range(8):
        for t in range(2):
            a = VR if p < 4 else TA + 2
            e(f'ds_read_b128 {v(RB + (p * 2 + t) * 4, 4)}, v{a} offset:{(p & 3) * 16384 + t * 1024}')
    for p in range(1, 8):
        for k in range(8):
            e(f'v_add_f32 v{RB + k}, v{RB + k}, v{RB + p * 8 + k}')
    o0, o1 = RB, RB + 4
    for x in [f'v_cvt_pk_bf16_f32 v{o0}, v{o0}, v{o0 + 1}',
              f'v_cvt_pk_bf16_f32 v{o0 + 1}, v{o0 + 2}, v{o0 + 3}',
              f'v_cvt_pk_bf16_f32 v{o0 + 2}, v{o1}, v{o1 + 1}',
              f'v_cvt_pk_bf16_f32 v{o0 + 3}, v{o1 + 2}, v{o1 + 3}',
              f'v_cndmask_b32_e64 v{o1}, v{o0}, v{o0 + 2}, s[{sMK}:{sMK + 1}]',
              f'v_cndmask_b32_e64 v{o1 + 1}, v{o0 + 1}, v{o0 + 3}, s[{sMK}:{sMK + 1}]',
              f'v_cndmask_b32_e64 v{o1 + 2}, v{o0 + 2}, v{o0}, s[{sMK}:{sMK + 1}]',
              f'v_cndmask_b32_e64 v{o1 + 3}, v{o0 + 3}, v{o0 + 1}, s[{sMK}:{sMK + 1}]',
              f'buffer_store_dwordx4 {v(o1, 4)}, v{VS}, s[{sD}:{sD + 3}], 0 offen']:
        e(x)
    if CFG['prof'] == 2:
        P.raw('  s_waitcnt vmcnt(0)')
        P.raw('  s_barrier')
        P.raw('  s_memrealtime s[72:73]')
        P.raw('  s_waitcnt lgkmcnt(0)')
        P.raw(f'  s_cmp_lg_u32 s{sWV}, 0')
        P.raw('  s_cbranch_scc1 L_k2_done')
        P.raw('  s_mov_b32 s66, 256')
        P.raw('  s_mov_b32 s67, 0x20000')
        P.raw('  s_not_b32 s70, s70')
        P.raw('  v_mov_b32 v14, s70')
        P.raw('  v_mov_b32 v15, s72')
        P.raw('  v_mov_b32 v16, 0')
        P.raw('  s_mov_b64 exec, 1')
        P.raw('  buffer_atomic_umax v14, v16, s[64:67], 0 offen offset:8')
        P.raw('  buffer_atomic_umax v15, v16, s[64:67], 0 offen offset:12')
        P.raw('  s_mov_b64 exec, -1')
        P.raw('  s_cmp_lg_u32 s2, 0')
        P.raw('  s_cbranch_scc1 L_k2_done')
        P.raw('  s_add_u32 s76, s8, 0x4000000')
        P.raw('  s_addc_u32 s77, s9, 0')
        P.raw('  s_mov_b32 s78, 0x40000')
        P.raw('  s_mov_b32 s79, 0x20000')
        P.raw('  v_lshlrev_b32 v17, 10, v201')
        for q in range(4):
            P.raw(f'  s_mov_b32 s50, {q * 65536}')
            P.raw(f'  buffer_load_dwordx4 v[20:23], v17, s[76:79], s50 offen offset:512')
            P.raw('  s_waitcnt vmcnt(0)')
            P.raw('  v_not_b32 v20, v20')
            P.raw('  buffer_atomic_umax v20, v16, s[64:67], 0 offen')
            P.raw('  buffer_atomic_umax v22, v16, s[64:67], 0 offen offset:4')
            P.raw('  s_waitcnt vmcnt(0)')
        P.raw('  v_lshlrev_b32 v17, 4, v201')
        P.raw('  buffer_load_dword v20, v17, s[76:79], 0 offen')
        P.raw('  buffer_load_dword v21, v16, s[76:79], 0 offen offset:516')
        P.raw('  s_waitcnt vmcnt(0)')
        P.raw('  v_sub_u32 v20, v20, v21')
        P.raw('  v_lshlrev_b32 v17, 2, v201')
        P.raw('  s_mov_b64 exec, 0x7ff')
        P.raw('  buffer_store_dword v20, v17, s[64:67], 0 offen offset:16')
    if CFG['spin2']:
        P.raw('  s_cmp_lg_u32 s2, 0')
        P.raw('  s_cbranch_scc1 L_k2_done')
        P.raw(f'  s_cmp_lg_u32 s{sWV}, 0')
        P.raw('  s_cbranch_scc1 L_k2_done')
        P.label('L_k2_spin')
        P.raw('  s_memrealtime s[72:73]')
        P.raw('  s_waitcnt lgkmcnt(0)')
        P.raw('  s_sub_u32 s72, s72, s70')
        P.raw(f'  s_cmp_lt_u32 s72, {CFG["spin2"]}')
        P.raw('  s_cbranch_scc1 L_k2_spin')
    P.label('L_k2_done')
    e('s_endpgm')
    return P.text()


HEADER = open('cdna_kernels/' + NAME + '.s.ref').read().split('; Override launch')[0]


def desc(name):
    return f'''.p2align 6
.amdhsa_kernel {name}
  .amdhsa_next_free_vgpr 256
  .amdhsa_next_free_sgpr 102
  .amdhsa_accum_offset 256
  .amdhsa_group_segment_fixed_size 0
  .amdhsa_kernarg_size 104
  .amdhsa_user_sgpr_count 2
  .amdhsa_user_sgpr_kernarg_segment_ptr 1
  .amdhsa_system_sgpr_workgroup_id_x 1
.end_amdhsa_kernel
'''


def main():
    out = HEADER
    out += '; @launch kernel=attn_kernel grid=(256,1,1) block=(512,1,1) lds=163840\n'
    out += '; @launch kernel=oproj_kernel grid=(224,1,1) block=(512,1,1) lds=163840\n'
    for i in range(CFG['extra']):
        out += '; @launch kernel=nop_kernel grid=(1,1,1) block=(64,1,1) lds=0\n'
    out += '.amdgcn_target "amdgcn-amd-amdhsa--gfx950"\n.text\n.globl attn_kernel\n.globl oproj_kernel\n'
    out += gen_k1() + gen_k2()
    if CFG['extra']:
        out += '.globl nop_kernel\n.p2align 8\n.type nop_kernel,@function\nnop_kernel:\n  s_endpgm\n'
    out += '.section .rodata,"a"\n' + desc('attn_kernel') + desc('oproj_kernel') + (desc('nop_kernel') if CFG['extra'] else '')
    path = sys.argv[1] if len(sys.argv) > 1 else 'cdna_kernels/' + NAME + '.s'
    open(path, 'w').write(out)
    import subprocess
    r = subprocess.run(['clang', '-x', 'assembler', '-target', 'amdgcn-amd-amdhsa', '-mcpu=gfx950', '-c', path, '-o', 'chk.o'], capture_output=True, text=True)
    print('wrote', path, len(out), 'bytes', 'ASM OK' if r.returncode == 0 else 'ASM FAIL\n' + r.stderr[:600])


main()
```

```python
import sys, os
sys.path.insert(0, os.path.dirname(__file__))
from asmlib import Prog, Ins, v, s, merge

NAME = 'concat_heads__mha_block_cached__gqa_block_cached__near_ridge'
CFG = dict(R=8, interleave=True, store_mod='', kv_mod='', k2_depth=5, prof=0, spin1=0, spin2=0, spin1c=0, extra=0, xb=3, pf=0, pf_mod='', early='-1,0,1,4,4,5,6,7,8,9', D1=7, D2=5, Dsw=18, w_mod='', x_mod='', k2v=1, la=2, tpw=31, ps_mod='', k3_mod='')
for a in sys.argv[2:]:
    k_, v_ = a.split('=')
    CFG[k_] = type(CFG[k_])(int(v_)) if not isinstance(CFG[k_], str) else v_.replace('+', ' ')

MFMA = 'v_mfma_f32_16x16x32_bf16'
SCALE_C = 128 ** -0.5 * 1.4426950408889634
import struct
def f32hex(x):
    return '0x%08x' % struct.unpack('<I', struct.pack('<f', x))[0]

sX, sK, sV, sW, sO = 16, 20, 24, 28, 32
sWAVE, sM0B, sSOFF, sXIT, sC, sOIT, sMASK = 36, 37, 38, 39, 40, 41, 42
S0 = 0
QO = 128
FR = 192
LACC = 224
ONES = 228
KADDR = 232
VADDR = 236
DK = 244
DV = 246
DWQ = 248
VM = 250
VT = 251
VMC = 252
VOFF = 253
VLOW = 254
VT2 = 255


def Qf(it, ks):
    return QO + 8 * (4 * it + ks)


def Oacc(e, t):
    return QO + 8 * (2 * e + t) + 4


def gen_k1():
    R = CFG['R']
    kvmod = (' ' + CFG['kv_mod']) if CFG['kv_mod'] else ''
    XB = CFG['xb']
    wmod = (' ' + CFG['w_mod']) if CFG['w_mod'] else ''
    xmod = (' ' + CFG['x_mod']) if CFG['x_mod'] else ''
    P = Prog()
    e = P.emit
    P.raw('.p2align 8')
    P.raw('.type attn_kernel,@function')
    P.label('attn_kernel')
    e('s_cmp_ge_u32 s2, 256')
    e('s_cbranch_scc1 L_k1_done')
    e('s_and_b32 s3, s2, 7')
    e('s_lshr_b32 s44, s2, 3')
    e('s_lshr_b32 s45, s3, 2')
    e('s_mul_i32 s46, s45, 40')
    e('s_load_dwordx8 s[4:11], s[0:1], s46')
    e('s_load_dwordx2 s[12:13], s[0:1], 96')
    e('s_add_u32 s46, s46, 32')
    e('s_load_dwordx2 s[14:15], s[0:1], s46')
    e('s_and_b32 s47, s3, 3')
    e('s_lshl_b32 s47, s47, 3')
    e('s_lshr_b32 s48, s44, 2')
    e('s_add_u32 s47, s47, s48')
    e('s_and_b32 s48, s44, 3')
    e('v_lshrrev_b32 v1, 6, v0')
    e('v_and_b32 v2, 63, v0')
    e(f'v_readfirstlane_b32 s{sWAVE}, v1')
    e('v_lshrrev_b32 v3, 4, v2')
    e('v_and_b32 v4, 15, v2')
    e('v_bfe_u32 v5, v2, 2, 2')
    e('v_and_b32 v6, 3, v2')
    e(f's_lshl_b32 s{sM0B}, s{sWAVE}, 11')
    e(f's_and_b32 s49, s{sWAVE}, 1')
    e('v_and_b32 v7, 1, v3')
    e('v_lshrrev_b32 v8, 1, v3')
    e('v_lshl_or_b32 v7, v8, 2, v7')
    e('s_lshl_b32 s50, s49, 3')
    e('v_or_b32 v8, s50, v7')
    e('v_xor_b32 v8, v8, v4')
    e('v_lshlrev_b32 v8, 4, v8')
    e(f's_lshl_b32 s50, s{sWAVE}, 3')
    e('v_add_u32 v9, s50, v3')
    e(f'v_lshl_add_u32 v{DWQ}, v9, 13, v8')
    e(f'v_add_u32 v{DWQ + 1}, {4 * 8192 - 1024}, v{DWQ}')
    e('v_lshlrev_b32 v9, 8, v3')
    e(f'v_add_u32 v9, s{sM0B}, v9')
    e('v_xor_b32 v8, v7, v4')
    e(f'v_lshl_add_u32 v{DV}, v8, 4, v9')
    e('v_xor_b32 v8, 8, v8')
    e(f'v_lshl_add_u32 v{DV + 1}, v8, 4, v9')
    e('s_lshl_b32 s50, s49, 2')
    e('v_xor_b32 v8, s50, v3')
    e('v_lshlrev_b32 v8, 1, v8')
    e('v_or_b32 v8, s49, v8')
    e('v_xor_b32 v8, v8, v4')
    e(f'v_lshl_add_u32 v{DK}, v8, 4, v9')
    e('v_xor_b32 v8, 8, v8')
    e(f'v_lshl_add_u32 v{DK + 1}, v8, 4, v9')
    e('s_waitcnt lgkmcnt(0)')
    e('s_lshl_b32 s50, s47, 8')
    e(f's_add_u32 s{sW}, s10, s50')
    e(f's_addc_u32 s{sW + 1}, s11, 0')
    e(f's_sub_u32 s{sW + 2}, 0x400000, s50')
    e(f's_mov_b32 s{sW + 3}, 0x20000')
    e('s_mul_i32 s50, s48, 114688')
    e(f's_add_u32 s{sX}, s4, s50')
    e(f's_addc_u32 s{sX + 1}, s5, 0')
    e(f's_mov_b32 s{sX + 2}, {5 * 114688}')
    e(f's_mov_b32 s{sX + 3}, 0x20000')
    e('s_lshl_b32 s50, s48, 5')
    e('s_add_u32 s50, s50, s47')
    e('s_lshl_b32 s50, s50, 17')
    e(f's_add_u32 s{sK}, s6, s50')
    e(f's_addc_u32 s{sK + 1}, s7, 0')
    e(f's_mov_b32 s{sK + 2}, {4 * 4194304 + 131072}')
    e(f's_mov_b32 s{sK + 3}, 0x20000')
    e(f's_add_u32 s{sV}, s8, s50')
    e(f's_addc_u32 s{sV + 1}, s9, 0')
    e(f's_mov_b32 s{sV + 2}, {4 * 4194304 + 131072}')
    e(f's_mov_b32 s{sV + 3}, 0x20000')
    e('s_lshl_b32 s50, s45, 3')
    e('s_add_u32 s50, s50, s48')
    e('s_mul_i32 s50, s50, 224')
    e('s_add_u32 s50, s50, s47')
    e('s_lshl_b32 s50, s50, 12')
    e(f's_add_u32 s{sO}, s12, s50')
    e(f's_addc_u32 s{sO + 1}, s13, 0')
    e(f's_mov_b32 s{sO + 2}, {4 * 7 * 131072 + 6 * 131072 + 4096}')
    e(f's_mov_b32 s{sO + 3}, 0x20000')
    e(f's_mov_b32 s{sXIT}, {4 * 114688}')
    e(f's_mov_b32 s{sOIT}, {4 * 7 * 131072}')
    e(f's_mov_b32 s{sC}, {f32hex(SCALE_C)}')

    SEQ = [4, 5, 6, 0, 1, 2, 3, 9, 7, 8]
    LW, LK, LV = 20, 24, 28

    def kvslot(n):
        return SEQ[n % 10]

    def dma_w(P, j):
        slot = 7 + (j % 3)
        for grp in range(4):
            P.emit(f's_mov_b32 m0, {slot * 16384 + grp * 4096}')
            P.emit(f's_mov_b32 s{sSOFF}, {j * 524288 + grp * 131072}')
            for c in range(4):
                P.emit(f'buffer_load_dwordx4 v{LW + c}, s[{sW}:{sW + 3}], s{sSOFF} offen offset:{c * 1024}{wmod} lds', tag=('w', j))

    def dma_kv(P, n):
        it, isv, t = n >> 4, (n >> 3) & 1, n & 7
        slot = kvslot(n)
        srd = sV if isv else sK
        for grp in range(4):
            P.emit(f's_mov_b32 m0, {slot * 16384 + grp * 4096}')
            P.emit(f's_mov_b32 s{sSOFF}, {it * 4 * 4194304 + t * 16384 + grp * 4096}')
            for c in range(4):
                d = LV + (c & 1) if isv else LK + c
                P.emit(f'buffer_load_dwordx4 v{d}, s[{srd}:{srd + 3}], s{sSOFF} offen offset:{c * 1024}{kvmod} lds', tag=('kv', n))

    early = [int(x) for x in CFG['early'].split(',')]
    avail = [-1, -1, -1, 4, 4, 4, 4, 6, 7, 8] + [8 + n - 9 for n in range(10, 32)]
    sched = {}
    for n in range(32):
        g_ = early[n] if n < 10 else 8 + n - (CFG['D1'] if n < CFG['Dsw'] else CFG['D2'])
        g_ = max(g_, avail[n])
        if n:
            g_ = max(g_, prev_g)
        prev_g = g_
        assert g_ < 8 + n
        sched.setdefault(g_, []).append(n)

    e(f's_cmp_eq_u32 s{sWAVE}, 7')
    e('s_cbranch_scc1 L_k1_loader')

    XD = DK
    XA = LACC
    e(f's_lshl_b32 s50, s{sWAVE}, 4')
    e('v_lshlrev_b32 v9, 1, v3')
    e('v_xor_b32 v9, v9, v4')
    e('v_add_u32 v8, s50, v3')
    e('v_lshlrev_b32 v8, 10, v8')
    e('v_lshl_add_u32 v8, v9, 4, v8')
    def ff(i):
        return (((i & 7) ^ ((i >> 3) << 2)) << 1) | (i >> 3)
    for p_ in range(4):
        e(f'v_xor_b32 v{XD + p_}, {ff(4 * p_) * 16}, v8')
    sXM = 51
    e(f's_lshl_b32 s{sXM}, s{sWAVE}, 13')

    def xdma(r):
        for it in range(2):
            for p_ in range(4):
                e(f's_add_u32 m0, s{sXM}, {it * 4096 + p_ * 1024}')
                e(f's_mov_b32 s{sSOFF}, {it * 4 * 114688 + p_ * 4096 + r * 256}')
                e(f'buffer_load_dwordx4 v{XD + p_}, s[{sX}:{sX + 3}], s{sSOFF} offen{xmod} lds', tag=('x', r))
    xdma(0)
    e('v_and_b32 v8, 1, v5')
    e('v_lshrrev_b32 v9, 1, v5')
    e('v_lshl_or_b32 v8, v9, 2, v8')
    e('v_and_b32 v9, 1, v3')
    e('v_lshl_or_b32 v8, v9, 3, v8')
    e('v_xor_b32 v8, v8, v6')
    e('v_lshlrev_b32 v8, 4, v8')
    e('v_and_b32 v10, 1, v6')
    e('v_lshl_or_b32 v8, v10, 3, v8')
    e(f'v_cmp_eq_u32_e64 s[{sMASK}:{sMASK + 1}], 1, v9')
    e('v_lshl_add_u32 v10, v3, 3, v5')
    e('v_lshl_add_u32 v10, v10, 8, v8')
    e('v_add_u32 v10, 114688, v10')
    for ks in range(4):
        for t in range(2):
            e(f'v_xor_b32 v{VADDR + 2 * ks + t}, {64 * ks + 8 * t}, v10')
    e('v_lshl_add_u32 v10, v3, 2, v5')
    e(f'v_lshl_add_u32 v{VLOW}, v10, 8, v8')
    e('v_lshrrev_b32 v9, 3, v4')
    e('v_and_b32 v10, 7, v4')
    e('v_lshlrev_b32 v11, 2, v9')
    e('v_xor_b32 v10, v10, v11')
    e('v_lshl_or_b32 v10, v10, 1, v9')
    e('v_xor_b32 v10, v10, v3')
    e('v_lshlrev_b32 v10, 4, v10')
    e('v_lshl_add_u32 v10, v4, 8, v10')
    for ks in range(4):
        e(f'v_xor_b32 v{KADDR + ks}, {64 * ks}, v10')
        e(f'v_add_u32 v{XA + ks}, s{sXM}, v{KADDR + ks}')
    e(f's_lshl_b32 s50, s{sWAVE}, 17')
    e('v_lshlrev_b32 v9, 4, v2')
    e(f'v_add_u32 v{VT2}, s50, v9')
    for k in range(4):
        e(f'v_mov_b32 v{ONES + k}, 0x3f803f80')

    def xread(r):
        P.wait_tag(('x', r))
        for s_ in range(4):
            for it in range(2):
                dst = ((r * 4 + s_) * 2 + it) * 4
                e(f'ds_read_b128 {v(dst, 4)}, v{XA + s_} offset:{it * 4096}')
        P.wait_lgkm(0)
        if r < 3:
            xdma(r + 1)

    xread(0)

    for j in range(8):
        P.comment(f'W step {j}')
        e('s_barrier')
        if 1 <= j <= 3:
            xread(j)
        slot_off = (j % 3) * 16384
        seq = []
        for kk in range(2):
            for ks in range(4):
                for t in range(2):
                    idx = (kk * 8 + ks * 2 + t)
                    fr = FR + (idx % 8) * 4
                    a = VADDR + 2 * ks + t
                    off = slot_off + kk * 8192
                    rd = [f'ds_read_b64_tr_b16 {v(fr, 2)}, v{a} offset:{off}',
                          f'ds_read_b64_tr_b16 {v(fr + 2, 2)}, v{a} offset:{off + 1024}']
                    mm = []
                    for it in range(2):
                        acc = Qf(it, ks) + 4 * t
                        xb = ((2 * j + kk) * 2 + it) * 4
                        c = '0' if (j == 0 and kk == 0) else v(acc, 4)
                        mm.append(f'{MFMA} {v(acc, 4)}, {v(fr, 4)}, {v(xb, 4)}, {c}')
                    seq.append((rd, mm))
        AHEAD = 6
        for i in range(AHEAD):
            for x in seq[i][0]:
                e(x)
        for i in range(16):
            for x in seq[i][1]:
                e(x)
            if i + AHEAD < 16:
                for x in seq[i + AHEAD][0]:
                    e(x)
    qconv = []
    for it in range(2):
        for ks in range(4):
            q0, q1 = Qf(it, ks), Qf(it, ks) + 4
            qconv += [f'v_cvt_pk_bf16_f32 v{q1}, v{q1}, v{q1 + 1}',
                      f'v_cvt_pk_bf16_f32 v{q1 + 1}, v{q1 + 2}, v{q1 + 3}',
                      f'v_cvt_pk_bf16_f32 v{q1 + 2}, v{q0}, v{q0 + 1}',
                      f'v_cvt_pk_bf16_f32 v{q1 + 3}, v{q0 + 2}, v{q0 + 3}',
                      f'v_cndmask_b32_e64 v{q0}, v{q1 + 2}, v{q1}, s[{sMASK}:{sMASK + 1}]',
                      f'v_cndmask_b32_e64 v{q0 + 1}, v{q1 + 3}, v{q1 + 1}, s[{sMASK}:{sMASK + 1}]',
                      f'v_cndmask_b32_e64 v{q0 + 2}, v{q1}, v{q1 + 2}, s[{sMASK}:{sMASK + 1}]',
                      f'v_cndmask_b32_e64 v{q0 + 3}, v{q1 + 1}, v{q1 + 3}, s[{sMASK}:{sMASK + 1}]']
    for ee in range(4):
        for t in range(2):
            qconv.append(f'v_xor_b32 v{VADDR + 2 * ee + t}, {64 * ee + 8 * t}, v{VLOW}')
    qconv.append(f'v_mov_b32 v{VOFF}, v{VT2}')

    win = {'k': 0, 'v': 0}

    def set_window(which, slot):
        w = slot >> 2
        out = []
        if w != win[which]:
            d = (w - win[which]) * 65536
            regs = range(KADDR, KADDR + 4) if which == 'k' else range(VADDR, VADDR + 8)
            for r_ in regs:
                if d > 0:
                    out.append(f'v_add_u32 v{r_}, {d}, v{r_}')
                else:
                    out.append(f'v_subrev_u32 v{r_}, {-d}, v{r_}')
            win[which] = w
        return out

    def max_stream(t, first):
        b = S0 + t * 16
        out = []
        vals = list(range(b, b + 16))
        if first:
            out.append(f'v_max3_f32 v{VM}, v{vals[0]}, v{vals[1]}, v{vals[2]}')
            out.append(f'v_max_f32 v{VM}, v{VM}, v{vals[3]}')
            vals = vals[4:]
        for k in range(0, len(vals), 2):
            out.append(f'v_max3_f32 v{VM}, v{VM}, v{vals[k]}, v{vals[k + 1]}')
        return out

    def exp_stream(t):
        b = S0 + t * 16
        out = []
        for u in range(2):
            bb = b + 8 * u
            for k in range(8):
                out.append(f'v_fma_f32 v{bb + k}, v{bb + k}, s{sC}, -v{VMC}')
            for k in range(8):
                out.append(f'v_exp_f32 v{bb + k}, v{bb + k}')
            for k in range(4):
                out.append(f'v_cvt_pk_bf16_f32 v{bb + k}, v{bb + 2 * k}, v{bb + 2 * k + 1}')
        return out

    def epilogue(it):
        out = [f'v_rcp_f32 v{VT}, v{LACC}']
        so = f's{sOIT}' if it else '0'
        smod = (' ' + CFG['store_mod']) if CFG['store_mod'] else ''
        for ee in range(4):
            o0, o1 = Oacc(ee, 0), Oacc(ee, 1)
            for k in range(4):
                out.append(f'v_mul_f32 v{o0 + k}, v{o0 + k}, v{VT}')
            for k in range(4):
                out.append(f'v_mul_f32 v{o1 + k}, v{o1 + k}, v{VT}')
            out += [f'v_cvt_pk_bf16_f32 v{o0}, v{o0}, v{o0 + 1}',
                    f'v_cvt_pk_bf16_f32 v{o0 + 1}, v{o0 + 2}, v{o0 + 3}',
                    f'v_cvt_pk_bf16_f32 v{o0 + 2}, v{o1}, v{o1 + 1}',
                    f'v_cvt_pk_bf16_f32 v{o0 + 3}, v{o1 + 2}, v{o1 + 3}',
                    f'v_cndmask_b32_e64 v{o1}, v{o0}, v{o0 + 2}, s[{sMASK}:{sMASK + 1}]',
                    f'v_cndmask_b32_e64 v{o1 + 1}, v{o0 + 1}, v{o0 + 3}, s[{sMASK}:{sMASK + 1}]',
                    f'v_cndmask_b32_e64 v{o1 + 2}, v{o0 + 2}, v{o0}, s[{sMASK}:{sMASK + 1}]',
                    f'v_cndmask_b32_e64 v{o1 + 3}, v{o0 + 3}, v{o0 + 1}, s[{sMASK}:{sMASK + 1}]',
                    f'buffer_store_dwordx4 {v(o1, 4)}, v{VOFF}, s[{sO}:{sO + 3}], {so} offen offset:{ee * 1024}{smod}']
        return out

    pending = qconv
    for it in range(2):
        for t in range(8):
            n = it * 16 + t
            slot = kvslot(n)
            e('s_barrier')
            for x in pending:
                e(x)
            pending = []
            for x in set_window('k', slot):
                e(x)
            so = (slot & 3) * 16384
            rd, mm = [], []
            for kt in range(4):
                for ks in range(4):
                    idx = kt * 4 + ks
                    fr = FR + (idx % 8) * 4
                    rd.append(f'ds_read_b128 {v(fr, 4)}, v{KADDR + ks} offset:{so + kt * 4096}')
                    acc = S0 + t * 16 + kt * 4
                    c = '0' if ks == 0 else v(acc, 4)
                    mm.append(f'{MFMA} {v(acc, 4)}, {v(fr, 4)}, {v(Qf(it, ks), 4)}, {c}')
            main = rd[:8]
            for i in range(16):
                main.append(mm[i])
                if i + 8 < 16:
                    main.append(rd[i + 8])
            side = max_stream(t - 1, t == 1) if t >= 1 else []
            for x in (rd[:8] + merge(main[8:], side)):
                e(x)
        for t in range(8):
            n = it * 16 + 8 + t
            slot = kvslot(n)
            e('s_barrier')
            for x in set_window('v', slot):
                e(x)
            so = (slot & 3) * 16384
            seq = []
            for u in range(2):
                pb = S0 + t * 16 + 8 * u
                for ee in range(4):
                    for tt in range(2):
                        idx = u * 8 + ee * 2 + tt
                        fr = FR + (idx % 8) * 4
                        a = VADDR + 2 * ee + tt
                        off = so + u * 8192
                        rd = [f'ds_read_b64_tr_b16 {v(fr, 2)}, v{a} offset:{off}',
                              f'ds_read_b64_tr_b16 {v(fr + 2, 2)}, v{a} offset:{off + 4096}']
                        acc = Oacc(ee, tt)
                        c = '0' if (t == 0 and u == 0) else v(acc, 4)
                        mm = [f'{MFMA} {v(acc, 4)}, {v(fr, 4)}, {v(pb, 4)}, {c}']
                        if ee == 3 and tt == 1:
                            c = '0' if (t == 0 and u == 0) else v(LACC, 4)
                            mm.append(f'{MFMA} {v(LACC, 4)}, {v(ONES, 4)}, {v(pb, 4)}, {c}')
                        seq.append((rd, mm))
            AHEAD = 6
            head = [x for i in range(AHEAD) for x in seq[i][0]]
            main = []
            for i in range(16):
                main += seq[i][1]
                if i + AHEAD < 16:
                    main += seq[i + AHEAD][0]
            for x in head:
                e(x)
            if t == 0:
                for x in max_stream(7, False):
                    e(x)
                e(f'v_mov_b32 v{VT}, v{VM}')
                e(f'v_permlane32_swap_b32 v{VM}, v{VT}')
                e(f'v_max_f32 v{VM}, v{VM}, v{VT}')
                e(f'v_mov_b32 v{VT}, v{VM}')
                e(f'v_permlane16_swap_b32 v{VM}, v{VT}')
                e(f'v_max_f32 v{VM}, v{VM}, v{VT}')
                e(f'v_mul_f32 v{VMC}, s{sC}, v{VM}')
                for x in exp_stream(0):
                    e(x)
                if not CFG['interleave']:
                    for tt in range(1, 8):
                        for x in exp_stream(tt):
                            e(x)
            side = exp_stream(t + 1) if (t < 7 and CFG['interleave']) else []
            for x in merge(main, side):
                e(x)
        pending = epilogue(it)
    for x in pending:
        e(x)
    if CFG['prof']:
        e('s_waitcnt vmcnt(0)')
        e('s_barrier')
    e('s_endpgm')

    L = Prog()
    L.label('L_k1_loader')
    def stamp(reg, idx, real=False):
        if CFG['prof']:
            L.raw('  s_memrealtime s[60:61]' if real else '  s_memtime s[60:61]')
            L.raw('  s_waitcnt lgkmcnt(0)')
            L.raw(f'  v_writelane_b32 v{reg}, s60, {idx}')
    stamp(12, 0, True)
    stamp(12, 1)
    if CFG['spin1'] or CFG['spin1c']:
        L.raw('  s_memrealtime s[70:71]' if CFG['spin1'] else '  s_memtime s[70:71]')
        L.raw('  s_waitcnt lgkmcnt(0)')
    le = L.emit
    for c in range(4):
        a_, m_ = c >> 1, c & 1
        le(f'v_xor_b32 v8, {a_ << 3}, v7')
        le('v_xor_b32 v8, v8, v4')
        le('v_lshlrev_b32 v8, 4, v8')
        le('v_lshl_add_u32 v8, v3, 13, v8')
        le(f'v_add_u32 v{LW + c}, {c * (32768 - 1024)}, v8')
    dma_w(L, 0)
    for c in range(4):
        a_, m_ = c >> 1, c & 1
        le(f'v_xor_b32 v8, {(4 * m_) ^ (4 * a_)}, v3')
        le(f'v_lshlrev_b32 v8, 1, v8')
        le(f'v_or_b32 v8, {a_}, v8')
        le('v_xor_b32 v8, v8, v4')
        le('v_lshlrev_b32 v8, 4, v8')
        le(f'v_lshl_add_u32 v{LK + c}, v3, 8, v8')
    for m_ in range(2):
        le(f'v_xor_b32 v8, {m_ << 3}, v7')
        le('v_xor_b32 v8, v8, v4')
        le('v_lshlrev_b32 v8, 4, v8')
        le(f'v_lshl_add_u32 v{LV + m_}, v3, 8, v8')
    dma_w(L, 1)
    dma_w(L, 2)
    pf_done = 0
    pfmod = (' ' + CFG['pf_mod']) if CFG['pf_mod'] else ''
    TP = CFG['k2v'] == 2
    if CFG['pf']:
        le('s_lshl_b32 s50, s47, 17')
        le('s_lshl_b32 s51, s48, 15')
        le('s_add_u32 s50, s50, s51')
        le('s_add_u32 s52, s14, s50')
        le('s_addc_u32 s53, s15, 0')
        le('s_mov_b32 s54, 32768')
        le('s_mov_b32 s55, 0x20000')
        le('v_lshlrev_b32 v32, 4, v2')
    if TP:
        tslot = [kvslot(22), kvslot(23)]
        for c in range(4):
            le(f'v_xor_b32 v{33 + c}, {c << 6}, v32')
        le('s_lshr_b32 s50, s50, 4')
        le('s_sub_u32 s58, 0x400000, s50')
        le('s_lshl_b32 s51, s45, 22')
        le('s_add_u32 s50, s50, s51')
        le('s_add_u32 s50, s50, 0x1000000')
        le('s_add_u32 s56, s12, s50')
        le('s_addc_u32 s57, s13, 0')
        le('s_mov_b32 s59, 0x20000')
        le('v_and_b32 v8, 1, v3')
        le('v_lshl_add_u32 v8, v8, 3, v5')
        le('v_lshlrev_b32 v8, 10, v8')
        le('v_lshl_add_u32 v8, v6, 4, v8')
        le('v_lshl_add_u32 v8, v5, 6, v8')
        le(f'v_mov_b32 v9, {tslot[0] * 16384}')
        le(f'v_mov_b32 v37, {tslot[1] * 16384}')
        le('v_cmp_gt_u32 vcc, 2, v3')
        le('v_cndmask_b32 v9, v37, v9, vcc')
        le('v_add_u32 v8, v8, v9')
        for p2 in range(4):
            le(f'v_xor_b32 v{37 + p2}, {p2 << 6}, v8')
    for n in sched.get(-1, []):
        dma_kv(L, n)
    for j in range(8):
        L.wait_tag(('w', j))
        stamp(11, j)
        L.emit('s_barrier')
        stamp(10, j)
        if 1 <= j <= 5:
            dma_w(L, j + 2)
        for n in sched.get(j, []):
            dma_kv(L, n)
    for n in range(32):
        L.wait_tag(('kv', n))
        stamp(11, 8 + n)
        L.emit('s_barrier')
        stamp(10, 8 + n)
        for n2 in sched.get(8 + n, []):
            dma_kv(L, n2)
        if CFG['pf'] and n >= CFG['pf'] and pf_done < 32:
            assert n >= 24
            outst = sum(1 for k_, _, _ in L.vm if k_ == 'l') - 16
            cnt = max(0, min(32 - pf_done, (63 - outst) // 4 * 4)) if n < min(31, CFG['tpw']) else 32 - pf_done
            for q in range(pf_done, pf_done + cnt):
                if q % 4 == 0:
                    le(f's_mov_b32 s{sSOFF}, {q * 1024}')
                    if TP:
                        le(f's_mov_b32 m0, {tslot[q >> 4] * 16384 + (q & 15) * 1024}')
                if TP:
                    le(f'buffer_load_dwordx4 v{33 + q % 4}, s[52:55], s{sSOFF} offen offset:{(q % 4) * 1024}{pfmod} lds', tag='wo')
                else:
                    le(f'buffer_load_dwordx4 {v(64 + q * 4, 4)}, v32, s[52:55], s{sSOFF} offen offset:{(q % 4) * 1024}{pfmod}')
            pf_done += cnt
        if TP and n == CFG['tpw']:
            assert pf_done == 32
            L.wait_tag('wo')
            for p in range(16):
                for t in range(2):
                    for kk in range(2):
                        le(f'ds_read_b64_tr_b16 {v(64 + (p * 2 + t) * 4 + kk * 2, 2)}, v{37 + (p & 3)} offset:{(p >> 2) * 256 + kk * 4096 + t * 8}')
            for p in range(16):
                le(f's_mov_b32 s{sSOFF}, {p * 262144}')
                for t in range(2):
                    le(f'buffer_store_dwordx4 {v(64 + (p * 2 + t) * 4, 4)}, v32, s[56:59], s{sSOFF} offen offset:{t * 1024}')
    if CFG['pf']:
        L.wait_vm_all()
    if CFG['prof']:
        L.emit('s_barrier')
        stamp(10, 40)
        stamp(12, 2, True)
        stamp(12, 3)
        L.emit('s_lshl_b32 s50, s2, 10')
        L.emit('s_add_u32 s50, s50, 0x4000000')
        L.emit('s_add_u32 s64, s12, s50')
        L.emit('s_addc_u32 s65, s13, 0')
        L.emit('s_mov_b32 s66, 1024')
        L.emit('s_mov_b32 s67, 0x20000')
        L.emit('v_lshlrev_b32 v13, 2, v2')
        L.emit('buffer_store_dword v10, v13, s[64:67], 0 offen')
        L.emit('buffer_store_dword v11, v13, s[64:67], 0 offen offset:256')
        L.emit('buffer_store_dword v12, v13, s[64:67], 0 offen offset:512')
    if CFG['spin1'] or CFG['spin1c']:
        L.raw('  s_cmp_lg_u32 s2, 0')
        L.raw('  s_cbranch_scc1 L_k1_done')
        L.label('L_k1_spin')
        L.raw('  s_memrealtime s[72:73]' if CFG['spin1'] else '  s_memtime s[72:73]')
        L.raw('  s_waitcnt lgkmcnt(0)')
        L.raw('  s_sub_u32 s72, s72, s70')
        L.raw(f'  s_cmp_lt_u32 s72, {CFG["spin1"] or CFG["spin1c"]}')
        L.raw('  s_cbranch_scc1 L_k1_spin')
    L.label('L_k1_done')
    L.emit('s_endpgm')
    return P.text() + L.text()


def gen_k2():
    D = CFG['k2_depth']
    P = Prog()
    e = P.emit
    ACC = 0
    OF = 64
    AF = OF + D * 16
    TA = AF + 32
    DW = TA + 4
    VO = DW + 2
    VR = VO + 1
    VS = VR + 1
    sOs, sWo, sD = 16, 20, 24
    sWV, sM0, sT, sT2, sMK = 36, 37, 38, 39, 42

    def acc(qq, ee, t):
        return ACC + ((qq * 2 + ee) * 2 + t) * 4

    P.raw('.p2align 8')
    P.raw('.type oproj_kernel,@function')
    P.label('oproj_kernel')
    e('s_cmp_ge_u32 s2, 224')
    e('s_cbranch_scc1 L_k2_done')
    if CFG['spin2']:
        P.raw('  s_memrealtime s[70:71]')
    if CFG['prof'] == 2:
        P.raw('  s_memrealtime s[70:71]')
        P.raw('  s_load_dwordx2 s[64:65], s[0:1], 88')
    e('s_and_b32 s3, s2, 7')
    e('s_lshr_b32 s44, s2, 3')
    e('s_lshr_b32 s45, s3, 2')
    e('s_mul_i32 s46, s45, 40')
    e('s_add_u32 s46, s46, 32')
    e('s_load_dwordx2 s[4:5], s[0:1], s46')
    e('s_load_dwordx2 s[6:7], s[0:1], 80')
    e('s_load_dwordx2 s[8:9], s[0:1], 96')
    e('s_mul_i32 s47, s44, 37')
    e('s_lshr_b32 s47, s47, 8')
    e('s_mul_i32 s48, s47, 7')
    e('s_sub_u32 s48, s44, s48')
    e('s_bfe_u32 s49, s3, 0x10001')
    e('s_mul_i32 s49, s49, 7')
    e('s_add_u32 s48, s48, s49')
    e('s_and_b32 s49, s3, 1')
    e('s_lshl_b32 s49, s49, 2')
    e('s_add_u32 s47, s47, s49')
    t0 = 200
    e(f'v_lshrrev_b32 v{t0}, 6, v0')
    e(f'v_and_b32 v{t0 + 1}, 63, v0')
    e(f'v_readfirstlane_b32 s{sWV}, v{t0}')
    L_, G_, I_, R_, C_ = t0 + 1, t0 + 2, t0 + 3, t0 + 4, t0 + 5
    e(f'v_lshrrev_b32 v{G_}, 4, v{L_}')
    e(f'v_and_b32 v{I_}, 15, v{L_}')
    e(f'v_bfe_u32 v{R_}, v{L_}, 2, 2')
    e(f'v_and_b32 v{C_}, 3, v{L_}')
    e(f's_mul_i32 s{sM0}, s{sWV}, {D * 4096}')
    a_, b_, c_ = t0 + 6, t0 + 7, t0 + 8
    e(f's_lshl_b32 s50, s{sWV}, 14')
    e(f'v_lshlrev_b32 v{a_}, 4, v{L_}')
    e(f'v_add_u32 v{VO}, s50, v{a_}')
    e(f'v_lshrrev_b32 v{a_}, 3, v{L_}')
    e(f'v_bfe_u32 v{b_}, v{L_}, 4, 1')
    e(f'v_and_b32 v{c_}, 7, v{L_}')
    e(f'v_xor_b32 v{b_}, v{b_}, v{c_}')
    e(f'v_lshlrev_b32 v{b_}, 4, v{b_}')
    e(f'v_lshl_add_u32 v{a_}, v{a_}, 10, v{b_}')
    e(f's_lshl_b32 s50, s{sWV}, 19')
    e(f'v_add_u32 v{DW}, s50, v{a_}')
    e(f'v_xor_b32 v{DW + 1}, 64, v{DW}')
    e(f'v_add_u32 v{DW + 1}, {8192 - 1024}, v{DW + 1}')
    e(f'v_lshrrev_b32 v{a_}, 1, v{R_}')
    e(f'v_and_b32 v{b_}, 1, v{G_}')
    e(f'v_cmp_eq_u32_e64 s[{sMK}:{sMK + 1}], 1, v{b_}')
    e(f'v_lshl_or_b32 v{a_}, v{b_}, 2, v{a_}')
    e(f'v_xor_b32 v{a_}, v{a_}, v{C_}')
    e(f'v_lshlrev_b32 v{a_}, 4, v{a_}')
    e(f'v_and_b32 v{b_}, 1, v{C_}')
    e(f'v_lshl_or_b32 v{a_}, v{b_}, 3, v{a_}')
    e(f'v_lshl_add_u32 v{b_}, v{G_}, 3, v{R_}')
    e(f'v_lshl_add_u32 v{a_}, v{b_}, 7, v{a_}')
    e(f'v_add_u32 v{a_}, s{sM0}, v{a_}')
    for ee in range(2):
        for t in range(2):
            e(f'v_xor_b32 v{TA + 2 * ee + t}, {64 * ee + 8 * t}, v{a_}')
    e(f'v_lshlrev_b32 v{a_}, 4, v{L_}')
    e(f's_lshl_b32 s50, s{sWV}, 11')
    e(f'v_add_u32 v{VR}, s50, v{a_}')
    e(f's_lshr_b32 s50, s{sWV}, 1')
    e('s_lshl_b32 s50, s50, 15')
    e(f's_and_b32 s51, s{sWV}, 1')
    e('s_lshl_b32 s51, s51, 6')
    e('s_add_u32 s50, s50, s51')
    e(f'v_lshlrev_b32 v{a_}, 11, v{I_}')
    e(f'v_lshl_add_u32 v{a_}, v{G_}, 4, v{a_}')
    e(f'v_add_u32 v{VS}, s50, v{a_}')
    e('s_waitcnt lgkmcnt(0)')
    e('s_mul_i32 s50, s45, 56')
    e('s_lshl_b32 s51, s48, 2')
    e('s_add_u32 s50, s50, s51')
    e('s_lshl_b32 s50, s50, 17')
    e(f's_add_u32 s{sOs}, s8, s50')
    e(f's_addc_u32 s{sOs + 1}, s9, 0')
    e(f's_mov_b32 s{sOs + 2}, {4 * 131072}')
    e(f's_mov_b32 s{sOs + 3}, 0x20000')
    e('s_lshl_b32 s50, s47, 7')
    e(f's_add_u32 s{sWo}, s4, s50')
    e(f's_addc_u32 s{sWo + 1}, s5, 0')
    e(f's_sub_u32 s{sWo + 2}, 0x400000, s50')
    e(f's_mov_b32 s{sWo + 3}, 0x20000')
    e('s_lshl_b32 s50, s48, 17')
    e('s_lshl_b32 s51, s45, 10')
    e('s_add_u32 s50, s50, s51')
    e('s_lshl_b32 s51, s47, 7')
    e('s_add_u32 s50, s50, s51')
    e(f's_add_u32 s{sD}, s6, s50')
    e(f's_addc_u32 s{sD + 1}, s7, 0')
    e(f's_sub_u32 s{sD + 2}, {896 * 2048}, s50')
    e(f's_mov_b32 s{sD + 3}, 0x20000')

    def issue(kk):
        st = kk % D
        e(f's_add_u32 m0, s{sM0}, {st * 4096}')
        e(f's_mov_b32 s{sT}, {kk * 32768}')
        e(f's_mov_b32 s{sT2}, {kk * 32768 + 16384 - 2048}')
        for m in range(4):
            so = sT if m < 2 else sT2
            e(f'buffer_load_dwordx4 v{DW + (m & 1)}, s[{sWo}:{sWo + 3}], s{so} offen offset:{m * 1024} lds', tag=('wo', kk))
        for qq in range(4):
            e(f's_mov_b32 s{sT}, {qq * 131072 + (kk >> 2) * 4096}')
            e(f'buffer_load_dwordx4 {v(OF + st * 16 + qq * 4, 4)}, v{VO}, s[{sOs}:{sOs + 3}], s{sT} offen offset:{(kk & 3) * 1024}')

    def reads(kk):
        st = kk % D
        out = []
        for ee in range(2):
            for t in range(2):
                fr = AF + (kk & 1) * 16 + (ee * 2 + t) * 4
                out += [f'ds_read_b64_tr_b16 {v(fr, 2)}, v{TA + 2 * ee + t} offset:{st * 4096}',
                        f'ds_read_b64_tr_b16 {v(fr + 2, 2)}, v{TA + 2 * ee + t} offset:{st * 4096 + 512}']
        return out

    for kk in range(D):
        issue(kk)
    P.wait_tag(('wo', 0))
    for x in reads(0):
        e(x)
    for kk in range(16):
        st = kk % D
        if kk + 1 < 16:
            P.wait_tag(('wo', kk + 1))
            for x in reads(kk + 1):
                e(x)
        for ee in range(2):
            for t in range(2):
                fr = AF + (kk & 1) * 16 + (ee * 2 + t) * 4
                for qq in range(4):
                    a = acc(qq, ee, t)
                    c = '0' if kk == 0 else v(a, 4)
                    e(f'{MFMA} {v(a, 4)}, {v(fr, 4)}, {v(OF + st * 16 + qq * 4, 4)}, {c}')
        if kk + D < 16:
            issue(kk + D)
    e('s_barrier')
    e(f'v_lshlrev_b32 v{TA}, 3, v{VR}')
    e(f'v_and_b32 v{TA + 1}, 0x3ff, v{VR}')
    e(f'v_and_b32 v{TA}, 0xffffc000, v{TA}')
    e(f'v_or_b32 v{TA}, v{TA}, v{TA + 1}')
    for tl in range(16):
        e(f'ds_write_b128 v{TA}, {v(ACC + tl * 4, 4)} offset:{tl * 1024}')
    P.wait_lgkm(0)
    e('s_barrier')
    RB = 64
    e(f'v_add_u32 v{TA + 2}, 65536, v{VR}')
    for p in range(8):
        for t in range(2):
            a = VR if p < 4 else TA + 2
            e(f'ds_read_b128 {v(RB + (p * 2 + t) * 4, 4)}, v{a} offset:{(p & 3) * 16384 + t * 1024}')
    for p in range(1, 8):
        for k in range(8):
            e(f'v_add_f32 v{RB + k}, v{RB + k}, v{RB + p * 8 + k}')
    o0, o1 = RB, RB + 4
    for x in [f'v_cvt_pk_bf16_f32 v{o0}, v{o0}, v{o0 + 1}',
              f'v_cvt_pk_bf16_f32 v{o0 + 1}, v{o0 + 2}, v{o0 + 3}',
              f'v_cvt_pk_bf16_f32 v{o0 + 2}, v{o1}, v{o1 + 1}',
              f'v_cvt_pk_bf16_f32 v{o0 + 3}, v{o1 + 2}, v{o1 + 3}',
              f'v_cndmask_b32_e64 v{o1}, v{o0}, v{o0 + 2}, s[{sMK}:{sMK + 1}]',
              f'v_cndmask_b32_e64 v{o1 + 1}, v{o0 + 1}, v{o0 + 3}, s[{sMK}:{sMK + 1}]',
              f'v_cndmask_b32_e64 v{o1 + 2}, v{o0 + 2}, v{o0}, s[{sMK}:{sMK + 1}]',
              f'v_cndmask_b32_e64 v{o1 + 3}, v{o0 + 3}, v{o0 + 1}, s[{sMK}:{sMK + 1}]',
              f'buffer_store_dwordx4 {v(o1, 4)}, v{VS}, s[{sD}:{sD + 3}], 0 offen']:
        e(x)
    if CFG['prof'] == 2:
        P.raw('  s_waitcnt vmcnt(0)')
        P.raw('  s_barrier')
        P.raw('  s_memrealtime s[72:73]')
        P.raw('  s_waitcnt lgkmcnt(0)')
        P.raw(f'  s_cmp_lg_u32 s{sWV}, 0')
        P.raw('  s_cbranch_scc1 L_k2_done')
        P.raw('  s_mov_b32 s66, 256')
        P.raw('  s_mov_b32 s67, 0x20000')
        P.raw('  s_not_b32 s70, s70')
        P.raw('  v_mov_b32 v14, s70')
        P.raw('  v_mov_b32 v15, s72')
        P.raw('  v_mov_b32 v16, 0')
        P.raw('  s_mov_b64 exec, 1')
        P.raw('  buffer_atomic_umax v14, v16, s[64:67], 0 offen offset:8')
        P.raw('  buffer_atomic_umax v15, v16, s[64:67], 0 offen offset:12')
        P.raw('  s_mov_b64 exec, -1')
        P.raw('  s_cmp_lg_u32 s2, 0')
        P.raw('  s_cbranch_scc1 L_k2_done')
        P.raw('  s_add_u32 s76, s8, 0x4000000')
        P.raw('  s_addc_u32 s77, s9, 0')
        P.raw('  s_mov_b32 s78, 0x40000')
        P.raw('  s_mov_b32 s79, 0x20000')
        P.raw('  v_lshlrev_b32 v17, 10, v201')
        for q in range(4):
            P.raw(f'  s_mov_b32 s50, {q * 65536}')
            P.raw(f'  buffer_load_dwordx4 v[20:23], v17, s[76:79], s50 offen offset:512')
            P.raw('  s_waitcnt vmcnt(0)')
            P.raw('  v_not_b32 v20, v20')
            P.raw('  buffer_atomic_umax v20, v16, s[64:67], 0 offen')
            P.raw('  buffer_atomic_umax v22, v16, s[64:67], 0 offen offset:4')
            P.raw('  s_waitcnt vmcnt(0)')
        P.raw('  v_lshlrev_b32 v17, 4, v201')
        P.raw('  buffer_load_dword v20, v17, s[76:79], 0 offen')
        P.raw('  buffer_load_dword v21, v16, s[76:79], 0 offen offset:516')
        P.raw('  s_waitcnt vmcnt(0)')
        P.raw('  v_sub_u32 v20, v20, v21')
        P.raw('  v_lshlrev_b32 v17, 2, v201')
        P.raw('  s_mov_b64 exec, 0x7ff')
        P.raw('  buffer_store_dword v20, v17, s[64:67], 0 offen offset:16')
    if CFG['spin2']:
        P.raw('  s_cmp_lg_u32 s2, 0')
        P.raw('  s_cbranch_scc1 L_k2_done')
        P.raw(f'  s_cmp_lg_u32 s{sWV}, 0')
        P.raw('  s_cbranch_scc1 L_k2_done')
        P.label('L_k2_spin')
        P.raw('  s_memrealtime s[72:73]')
        P.raw('  s_waitcnt lgkmcnt(0)')
        P.raw('  s_sub_u32 s72, s72, s70')
        P.raw(f'  s_cmp_lt_u32 s72, {CFG["spin2"]}')
        P.raw('  s_cbranch_scc1 L_k2_spin')
    P.label('L_k2_done')
    e('s_endpgm')
    return P.text()


def gen_k2b():
    LA = CFG['la']
    R = 5
    P = Prog()
    e = P.emit
    ACC = 0
    WF = 64
    OFR = 192
    VL, VRD, VRW, VRR = 248, 249, 250, 251
    sOs, sWo, sD = 16, 20, 24
    sWV, sM0, sT, sKH = 36, 37, 38, 39
    psmod = (' ' + CFG['ps_mod']) if CFG['ps_mod'] else ''

    def acc(qt, t):
        return ACC + (qt * 2 + t) * 4

    P.raw('.p2align 8')
    P.raw('.type oproj_kernel,@function')
    P.label('oproj_kernel')
    e('s_cmp_ge_u32 s2, 256')
    e('s_cbranch_scc1 L_k2_done')
    if CFG['prof'] == 2:
        P.raw('  s_memrealtime s[70:71]')
    e('s_load_dwordx2 s[8:9], s[0:1], 96')
    e('v_lshrrev_b32 v1, 6, v0')
    e(f'v_readfirstlane_b32 s{sWV}, v1')
    e('v_and_b32 v2, 63, v0')
    e(f'v_lshlrev_b32 v{VL}, 4, v2')
    e('s_and_b32 s3, s2, 7')
    e('s_lshr_b32 s45, s3, 2')
    e('s_and_b32 s46, s3, 3')
    e('s_lshr_b32 s47, s2, 5')
    e('s_bfe_u32 s48, s2, 0x20003')
    e(f's_lshr_b32 s{sKH}, s{sWV}, 2')
    e(f's_and_b32 s49, s{sWV}, 3')
    e('s_lshl_b32 s50, s45, 3')
    e('s_add_u32 s50, s50, s47')
    e('s_mul_i32 s51, s50, 7')
    e(f's_add_u32 s51, s51, s{sWV}')
    e('s_lshl_b32 s51, s51, 17')
    e('s_lshl_b32 s52, s46, 15')
    e('s_add_u32 s51, s51, s52')
    e('s_lshl_b32 s52, s45, 4')
    e('s_lshl_b32 s53, s48, 2')
    e('s_add_u32 s52, s52, s53')
    e('s_add_u32 s52, s52, s49')
    e('s_lshl_b32 s52, s52, 18')
    e('s_lshl_b32 s53, s46, 16')
    e('s_add_u32 s52, s52, s53')
    e(f's_lshl_b32 s53, s{sKH}, 15')
    e('s_add_u32 s52, s52, s53')
    e('s_add_u32 s52, s52, 0x1000000')
    e('s_lshl_b32 s53, s50, 2')
    e('s_add_u32 s53, s53, s48')
    e('s_lshl_b32 s53, s53, 2')
    e('s_add_u32 s53, s53, s49')
    e('s_lshl_b32 s53, s53, 2')
    e('s_add_u32 s53, s53, s46')
    e('s_mul_i32 s53, s53, 14336')
    e('s_add_u32 s53, s53, 0x2000000')
    e(f's_lshl_b32 s{sM0}, s{sWV}, 11')
    e(f's_mul_i32 s54, s{sKH}, 14336')
    e(f'v_add_u32 v{VRD}, s54, v{VL}')
    e('s_waitcnt lgkmcnt(0)')
    e(f's_add_u32 s{sOs}, s8, s51')
    e(f's_addc_u32 s{sOs + 1}, s9, 0')
    e(f's_mov_b32 s{sOs + 2}, 32768')
    e(f's_mov_b32 s{sOs + 3}, 0x20000')
    e(f's_add_u32 s{sWo}, s8, s52')
    e(f's_addc_u32 s{sWo + 1}, s9, 0')
    e(f's_mov_b32 s{sWo + 2}, 32768')
    e(f's_mov_b32 s{sWo + 3}, 0x20000')
    e(f's_add_u32 s{sD}, s8, s53')
    e(f's_addc_u32 s{sD + 1}, s9, 0')
    e(f's_mov_b32 s{sD + 2}, 14336')
    e(f's_mov_b32 s{sD + 3}, 0x20000')
    e(f's_cmp_eq_u32 s{sWV}, 7')
    e('s_cbranch_scc1 L_k2_w7')

    def body(P, odma):
        e = P.emit

        def issue(st):
            out = []
            if odma:
                for kh in range(2):
                    out.append(f's_add_u32 m0, s{sM0}, {(st % R) * 28672 + kh * 14336}')
                    out.append(f's_mov_b32 s{sT}, {kh * 16384 + (st >> 1) * 4096 + (st & 1) * 2048}')
                    for c in range(2):
                        out.append(Ins(f'buffer_load_dwordx4 v{VL}, s[{sOs}:{sOs + 3}], s{sT} offen offset:{c * 1024} lds', tag=('o', st)))
            out.append(f's_mov_b32 s{sT}, {st * 4096}')
            for c in range(4):
                out.append(f'buffer_load_dwordx4 {v(WF + (st * 4 + c) * 4, 4)}, v{VL}, s[{sWo}:{sWo + 3}], s{sT} offen offset:{c * 1024}')
            return out

        for st in range(LA):
            for x in issue(st):
                e(x)
        for st in range(8):
            P.comment(f'step {st}')
            P.wait_tag(('o', st))
            e('s_barrier')
            base = (st % R) * 28672
            def rd(kk, qt):
                off = base + qt * 2048 + kk * 1024
                if off >= 65536:
                    return f'ds_read_b128 {v(OFR + kk * 28 + qt * 4, 4)}, v{VRR} offset:{off - 65536}'
                return f'ds_read_b128 {v(OFR + kk * 28 + qt * 4, 4)}, v{VRD} offset:{off}'
            mm = []
            for kk in range(2):
                for qt in range(7):
                    for t in range(2):
                        a = acc(qt, t)
                        c = '0' if (st == 0 and kk == 0) else v(a, 4)
                        mm.append(f'{MFMA} {v(a, 4)}, {v(WF + (st * 4 + kk * 2 + t) * 4, 4)}, {v(OFR + kk * 28 + qt * 4, 4)}, {c}')
            for qt in range(7):
                e(rd(0, qt))
            for qt in range(7):
                e(rd(1, qt))
            side = issue(st + LA) if st + LA < 8 else []
            for x in merge(mm, side):
                e(x)

    def tail(P):
        e = P.emit
        e('s_barrier')
        if CFG['prof'] == 2:
            P.raw('  s_memrealtime s[74:75]')
        e(f's_cmp_eq_u32 s{sKH}, 1')
        e('s_cbranch_scc1 L_k2_t1')
        for kh in range(2):
            if kh:
                P.label('L_k2_t1')
            snd = range(4, 7) if kh == 0 else range(0, 4)
            keep = range(0, 4) if kh == 0 else range(4, 7)
            for qt in snd:
                for t in range(2):
                    e(f'ds_write_b128 v{VRW}, {v(acc(qt, t), 4)} offset:{(qt * 2 + t) * 1024}')
            P.wait_lgkm(0)
            e('s_barrier')
            for qt in keep:
                for t in range(2):
                    e(f'ds_read_b128 {v(WF + (qt * 2 + t) * 4, 4)}, v{VRW} offset:{(qt * 2 + t) * 1024}')
            for qt in keep:
                e(f's_mov_b32 s{sT}, {qt * 2048}')
                for t in range(2):
                    a, b = acc(qt, t), WF + (qt * 2 + t) * 4
                    for k in range(0, 4, 2):
                        e(f'v_pk_add_f32 {v(a + k, 2)}, {v(a + k, 2)}, {v(b + k, 2)}')
                    e(f'buffer_store_dwordx4 {v(a, 4)}, v{VL}, s[{sD}:{sD + 3}], s{sT} offen offset:{t * 1024}{psmod}')
            if CFG['prof'] == 2 and kh == 0:
                for x in ['s_waitcnt vmcnt(0)', 's_memrealtime s[72:73]', 's_waitcnt lgkmcnt(0)', f's_cmp_lg_u32 s{sWV}, 0', 's_cbranch_scc1 L_k2_done',
                          's_lshl_b32 s50, s2, 4', 's_add_u32 s50, s50, 0x4100000', 's_add_u32 s64, s8, s50', 's_addc_u32 s65, s9, 0', 's_mov_b32 s66, 16', 's_mov_b32 s67, 0x20000',
                          'v_mov_b32 v14, s70', 'v_mov_b32 v15, s74', 'v_mov_b32 v16, s72', 'v_mov_b32 v17, 0', 'v_mov_b32 v18, 0', 's_mov_b64 exec, 1',
                          'buffer_store_dwordx4 v[14:17], v18, s[64:67], 0 offen']:
                    P.raw('  ' + x)
            e('s_endpgm')

    pre = [f'v_add_u32 v{VRR}, 65536, v{VRD}', 's_mul_i32 s54, s49, 14336', f'v_add_u32 v{VRW}, s54, v{VL}']
    for x in pre:
        e(x)
    body(P, True)
    e('s_branch L_k2_tail')
    Q = Prog()
    Q.label('L_k2_w7')
    for x in pre:
        Q.emit(x)
    body(Q, False)
    Q.emit('s_nop 7')
    Q.emit('s_nop 7')
    T = Prog()
    T.label('L_k2_tail')
    T.emit('s_nop 7')
    T.emit('s_nop 7')
    tail(T)
    T.label('L_k2_done')
    T.emit('s_endpgm')

    Z = Prog()
    z = Z.emit
    k3mod = (' ' + CFG['k3_mod']) if CFG['k3_mod'] else ''
    Z.raw('.p2align 8')
    Z.raw('.type red_kernel,@function')
    Z.label('red_kernel')
    z('s_cmp_ge_u32 s2, 256')
    z('s_cbranch_scc1 L_k3_done')
    if CFG['prof'] == 2:
        Z.raw('  s_memrealtime s[70:71]')
        Z.raw('  s_load_dwordx2 s[64:65], s[0:1], 88')
    z('s_load_dwordx2 s[8:9], s[0:1], 96')
    z('s_load_dwordx2 s[6:7], s[0:1], 80')
    z('v_lshrrev_b32 v1, 6, v0')
    z('v_readfirstlane_b32 s36, v1')
    z('v_and_b32 v2, 63, v0')
    z('v_lshlrev_b32 v3, 4, v2')
    z('v_and_b32 v4, 15, v2')
    z('v_lshrrev_b32 v5, 4, v2')
    z('v_lshlrev_b32 v4, 11, v4')
    z('v_lshl_add_u32 v4, v5, 4, v4')
    z('s_mul_i32 s50, s2, 57344')
    z('s_lshl_b32 s51, s36, 11')
    z('s_add_u32 s50, s50, s51')
    z('s_add_u32 s50, s50, 0x2000000')
    z('s_bfe_u32 s51, s2, 0x30004')
    z('s_mul_i32 s51, s51, 112')
    z('s_lshl_b32 s52, s36, 4')
    z('s_add_u32 s51, s51, s52')
    z('s_lshl_b32 s51, s51, 11')
    z('s_lshr_b32 s52, s2, 7')
    z('s_lshl_b32 s52, s52, 10')
    z('s_add_u32 s51, s51, s52')
    z('s_and_b32 s52, s2, 15')
    z('s_lshl_b32 s52, s52, 6')
    z('s_add_u32 s51, s51, s52')
    z('s_waitcnt lgkmcnt(0)')
    z('s_add_u32 s16, s8, s50')
    z('s_addc_u32 s17, s9, 0')
    z(f's_mov_b32 s18, {3 * 14336 + 2048}')
    z('s_mov_b32 s19, 0x20000')
    for kq in range(4):
        z(f's_mov_b32 s38, {kq * 14336}')
        for t in range(2):
            z(f'buffer_load_dwordx4 {v(8 + (kq * 2 + t) * 4, 4)}, v3, s[16:19], s38 offen offset:{t * 1024}{k3mod}')
    z('s_add_u32 s20, s6, s51')
    z('s_addc_u32 s21, s7, 0')
    z(f's_sub_u32 s22, {896 * 2048}, s51')
    z('s_mov_b32 s23, 0x20000')
    for kq in range(1, 4):
        for k in range(0, 8, 2):
            z(f'v_pk_add_f32 {v(8 + k, 2)}, {v(8 + k, 2)}, {v(8 + kq * 8 + k, 2)}')
    for k in range(4):
        z(f'v_cvt_pk_bf16_f32 v{8 + k}, v{8 + 2 * k}, v{9 + 2 * k}')
    z('buffer_store_dwordx4 v[8:11], v4, s[20:23], 0 offen')
    if CFG['prof'] == 2:
        L_ = ['s_waitcnt vmcnt(0)', 's_memrealtime s[72:73]', 's_waitcnt lgkmcnt(0)', 's_cmp_lg_u32 s36, 0', 's_cbranch_scc1 L_k3_done',
              's_mov_b32 s66, 256', 's_mov_b32 s67, 0x20000', 's_not_b32 s70, s70', 'v_mov_b32 v14, s70', 'v_mov_b32 v15, s72', 'v_mov_b32 v16, 0',
              's_mov_b64 exec, 1', 'buffer_atomic_umax v14, v16, s[64:67], 0 offen offset:24', 'buffer_atomic_umax v15, v16, s[64:67], 0 offen offset:28', 's_mov_b64 exec, -1',
              's_cmp_lg_u32 s2, 0', 's_cbranch_scc1 L_k3_done',
              's_add_u32 s76, s8, 0x4000000', 's_addc_u32 s77, s9, 0', 's_mov_b32 s78, 0x200000', 's_mov_b32 s79, 0x20000', 'v_lshlrev_b32 v17, 10, v2']
        for q in range(4):
            L_ += [f's_mov_b32 s50, {q * 65536}', 'buffer_load_dwordx4 v[20:23], v17, s[76:79], s50 offen offset:512', 's_waitcnt vmcnt(0)', 'v_not_b32 v20, v20',
                   'buffer_atomic_umax v20, v16, s[64:67], 0 offen', 'buffer_atomic_umax v22, v16, s[64:67], 0 offen offset:4', 's_waitcnt vmcnt(0)',
                   f's_mov_b32 s50, {0x100000 + q * 1024}', 'buffer_load_dwordx4 v[20:23], v3, s[76:79], s50 offen', 's_waitcnt vmcnt(0)', 'v_not_b32 v23, v20',
                   'buffer_atomic_umax v23, v16, s[64:67], 0 offen offset:8', 'buffer_atomic_umax v20, v16, s[64:67], 0 offen offset:12',
                   'buffer_atomic_umax v21, v16, s[64:67], 0 offen offset:16', 'buffer_atomic_umax v22, v16, s[64:67], 0 offen offset:20', 's_waitcnt vmcnt(0)']
        for x in L_:
            Z.raw('  ' + x)
    Z.label('L_k3_done')
    z('s_endpgm')
    return P.text() + Q.text() + T.text() + Z.text()


HEADER = open('cdna_kernels/' + NAME + '.s.ref').read().split('; Override launch')[0]


def desc(name, nv=256):
    return f'''.p2align 6
.amdhsa_kernel {name}
  .amdhsa_next_free_vgpr {nv}
  .amdhsa_next_free_sgpr 102
  .amdhsa_accum_offset {nv}
  .amdhsa_group_segment_fixed_size 0
  .amdhsa_kernarg_size 104
  .amdhsa_user_sgpr_count 2
  .amdhsa_user_sgpr_kernarg_segment_ptr 1
  .amdhsa_system_sgpr_workgroup_id_x 1
.end_amdhsa_kernel
'''


def main():
    out = HEADER
    out += '; @launch kernel=attn_kernel grid=(256,1,1) block=(512,1,1) lds=163840\n'
    if CFG['k2v'] == 2:
        out += '; @launch kernel=oproj_kernel grid=(256,1,1) block=(512,1,1) lds=143360\n'
        out += '; @launch kernel=red_kernel grid=(256,1,1) block=(448,1,1) lds=0\n'
    else:
        out += '; @launch kernel=oproj_kernel grid=(224,1,1) block=(512,1,1) lds=163840\n'
    for i in range(CFG['extra']):
        out += '; @launch kernel=nop_kernel grid=(1,1,1) block=(64,1,1) lds=0\n'
    out += '.amdgcn_target "amdgcn-amd-amdhsa--gfx950"\n.text\n.globl attn_kernel\n.globl oproj_kernel\n'
    out += gen_k1() + (('.globl red_kernel\n' + gen_k2b()) if CFG['k2v'] == 2 else gen_k2())
    if CFG['extra']:
        out += '.globl nop_kernel\n.p2align 8\n.type nop_kernel,@function\nnop_kernel:\n  s_endpgm\n'
    out += '.section .rodata,"a"\n' + desc('attn_kernel') + desc('oproj_kernel') + (desc('red_kernel', 40) if CFG['k2v'] == 2 else '') + (desc('nop_kernel') if CFG['extra'] else '')
    path = sys.argv[1] if len(sys.argv) > 1 else 'cdna_kernels/' + NAME + '.s'
    open(path, 'w').write(out)
    import subprocess
    r = subprocess.run(['clang', '-x', 'assembler', '-target', 'amdgcn-amd-amdhsa', '-mcpu=gfx950', '-c', path, '-o', 'chk.o'], capture_output=True, text=True)
    print('wrote', path, len(out), 'bytes', 'ASM OK' if r.returncode == 0 else 'ASM FAIL\n' + r.stderr[:600])


main()
```

```python
import sys, os
sys.path.insert(0, os.path.dirname(__file__))
from asmlib import Prog, Ins, v, s, merge

NAME = 'concat_heads__mha_block_cached__gqa_block_cached__near_ridge'
CFG = dict(R=8, interleave=True, store_mod='', kv_mod='', k2_depth=5, prof=0, spin1=0, spin2=0, spin1c=0, extra=0, xb=3, pf=0, pf_mod='', early='-1,0,1,4,4,5,6,7,8,9', D1=7, D2=5, Dsw=18, w_mod='', x_mod='', k2v=1, la=2, tpw=31, ps_mod='', k3_mod='', pipe=1, ah=6, nopipe_last=1)
for a in sys.argv[2:]:
    k_, v_ = a.split('=')
    CFG[k_] = type(CFG[k_])(int(v_)) if not isinstance(CFG[k_], str) else v_.replace('+', ' ')

MFMA = 'v_mfma_f32_16x16x32_bf16'
SCALE_C = 128 ** -0.5 * 1.4426950408889634
import struct
def f32hex(x):
    return '0x%08x' % struct.unpack('<I', struct.pack('<f', x))[0]

sX, sK, sV, sW, sO = 16, 20, 24, 28, 32
sWAVE, sM0B, sSOFF, sXIT, sC, sOIT, sMASK = 36, 37, 38, 39, 40, 41, 42
S0 = 0
QO = 128
FR = 192
LACC = 224
ONES = 228
KADDR = 232
VADDR = 236
DK = 244
DV = 246
DWQ = 248
VM = 250
VT = 251
VMC = 252
VOFF = 253
VLOW = 254
VT2 = 255


def Qf(it, ks):
    return QO + 8 * (4 * it + ks)


def Oacc(e, t):
    return QO + 8 * (2 * e + t) + 4


def gen_k1():
    R = CFG['R']
    kvmod = (' ' + CFG['kv_mod']) if CFG['kv_mod'] else ''
    XB = CFG['xb']
    wmod = (' ' + CFG['w_mod']) if CFG['w_mod'] else ''
    xmod = (' ' + CFG['x_mod']) if CFG['x_mod'] else ''
    P = Prog()
    e = P.emit
    P.raw('.p2align 8')
    P.raw('.type attn_kernel,@function')
    P.label('attn_kernel')
    e('s_cmp_ge_u32 s2, 256')
    e('s_cbranch_scc1 L_k1_done')
    e('s_and_b32 s3, s2, 7')
    e('s_lshr_b32 s44, s2, 3')
    e('s_lshr_b32 s45, s3, 2')
    e('s_mul_i32 s46, s45, 40')
    e('s_load_dwordx8 s[4:11], s[0:1], s46')
    e('s_load_dwordx2 s[12:13], s[0:1], 96')
    e('s_add_u32 s46, s46, 32')
    e('s_load_dwordx2 s[14:15], s[0:1], s46')
    e('s_and_b32 s47, s3, 3')
    e('s_lshl_b32 s47, s47, 3')
    e('s_lshr_b32 s48, s44, 2')
    e('s_add_u32 s47, s47, s48')
    e('s_and_b32 s48, s44, 3')
    e('v_lshrrev_b32 v1, 6, v0')
    e('v_and_b32 v2, 63, v0')
    e(f'v_readfirstlane_b32 s{sWAVE}, v1')
    e('v_lshrrev_b32 v3, 4, v2')
    e('v_and_b32 v4, 15, v2')
    e('v_bfe_u32 v5, v2, 2, 2')
    e('v_and_b32 v6, 3, v2')
    e(f's_lshl_b32 s{sM0B}, s{sWAVE}, 11')
    e(f's_and_b32 s49, s{sWAVE}, 1')
    e('v_and_b32 v7, 1, v3')
    e('v_lshrrev_b32 v8, 1, v3')
    e('v_lshl_or_b32 v7, v8, 2, v7')
    e('s_lshl_b32 s50, s49, 3')
    e('v_or_b32 v8, s50, v7')
    e('v_xor_b32 v8, v8, v4')
    e('v_lshlrev_b32 v8, 4, v8')
    e(f's_lshl_b32 s50, s{sWAVE}, 3')
    e('v_add_u32 v9, s50, v3')
    e(f'v_lshl_add_u32 v{DWQ}, v9, 13, v8')
    e(f'v_add_u32 v{DWQ + 1}, {4 * 8192 - 1024}, v{DWQ}')
    e('v_lshlrev_b32 v9, 8, v3')
    e(f'v_add_u32 v9, s{sM0B}, v9')
    e('v_xor_b32 v8, v7, v4')
    e(f'v_lshl_add_u32 v{DV}, v8, 4, v9')
    e('v_xor_b32 v8, 8, v8')
    e(f'v_lshl_add_u32 v{DV + 1}, v8, 4, v9')
    e('s_lshl_b32 s50, s49, 2')
    e('v_xor_b32 v8, s50, v3')
    e('v_lshlrev_b32 v8, 1, v8')
    e('v_or_b32 v8, s49, v8')
    e('v_xor_b32 v8, v8, v4')
    e(f'v_lshl_add_u32 v{DK}, v8, 4, v9')
    e('v_xor_b32 v8, 8, v8')
    e(f'v_lshl_add_u32 v{DK + 1}, v8, 4, v9')
    e('s_waitcnt lgkmcnt(0)')
    e('s_lshl_b32 s50, s47, 8')
    e(f's_add_u32 s{sW}, s10, s50')
    e(f's_addc_u32 s{sW + 1}, s11, 0')
    e(f's_sub_u32 s{sW + 2}, 0x400000, s50')
    e(f's_mov_b32 s{sW + 3}, 0x20000')
    e('s_mul_i32 s50, s48, 114688')
    e(f's_add_u32 s{sX}, s4, s50')
    e(f's_addc_u32 s{sX + 1}, s5, 0')
    e(f's_mov_b32 s{sX + 2}, {5 * 114688}')
    e(f's_mov_b32 s{sX + 3}, 0x20000')
    e('s_lshl_b32 s50, s48, 5')
    e('s_add_u32 s50, s50, s47')
    e('s_lshl_b32 s50, s50, 17')
    e(f's_add_u32 s{sK}, s6, s50')
    e(f's_addc_u32 s{sK + 1}, s7, 0')
    e(f's_mov_b32 s{sK + 2}, {4 * 4194304 + 131072}')
    e(f's_mov_b32 s{sK + 3}, 0x20000')
    e(f's_add_u32 s{sV}, s8, s50')
    e(f's_addc_u32 s{sV + 1}, s9, 0')
    e(f's_mov_b32 s{sV + 2}, {4 * 4194304 + 131072}')
    e(f's_mov_b32 s{sV + 3}, 0x20000')
    e('s_lshl_b32 s50, s45, 3')
    e('s_add_u32 s50, s50, s48')
    e('s_mul_i32 s50, s50, 224')
    e('s_add_u32 s50, s50, s47')
    e('s_lshl_b32 s50, s50, 12')
    e(f's_add_u32 s{sO}, s12, s50')
    e(f's_addc_u32 s{sO + 1}, s13, 0')
    e(f's_mov_b32 s{sO + 2}, {4 * 7 * 131072 + 6 * 131072 + 4096}')
    e(f's_mov_b32 s{sO + 3}, 0x20000')
    e(f's_mov_b32 s{sXIT}, {4 * 114688}')
    e(f's_mov_b32 s{sOIT}, {4 * 7 * 131072}')
    e(f's_mov_b32 s{sC}, {f32hex(SCALE_C)}')

    SEQ = [4, 5, 6, 0, 1, 2, 3, 9, 7, 8]
    LW, LK, LV = 20, 24, 28

    def kvslot(n):
        return SEQ[n % 10]

    def piped(n):
        return bool(CFG['pipe']) and 1 <= n < 32 - CFG['nopipe_last']

    def dma_w(P, j):
        slot = 7 + (j % 3)
        for grp in range(4):
            P.emit(f's_mov_b32 m0, {slot * 16384 + grp * 4096}')
            P.emit(f's_mov_b32 s{sSOFF}, {j * 524288 + grp * 131072}')
            for c in range(4):
                P.emit(f'buffer_load_dwordx4 v{LW + c}, s[{sW}:{sW + 3}], s{sSOFF} offen offset:{c * 1024}{wmod} lds', tag=('w', j))

    def dma_kv(P, n):
        it, isv, t = n >> 4, (n >> 3) & 1, n & 7
        slot = kvslot(n)
        srd = sV if isv else sK
        for grp in range(4):
            P.emit(f's_mov_b32 m0, {slot * 16384 + grp * 4096}')
            P.emit(f's_mov_b32 s{sSOFF}, {it * 4 * 4194304 + t * 16384 + grp * 4096}')
            for c in range(4):
                d = LV + (c & 1) if isv else LK + c
                P.emit(f'buffer_load_dwordx4 v{d}, s[{srd}:{srd + 3}], s{sSOFF} offen offset:{c * 1024}{kvmod} lds', tag=('kv', n))

    early = [int(x) for x in CFG['early'].split(',')]
    avail = [-1, -1, -1, 4, 4, 4, 4, 6, 7, 8] + [8 + n - 9 for n in range(10, 32)]
    sched = {}
    for n in range(32):
        g_ = early[n] if n < 10 else 8 + n - (CFG['D1'] if n < CFG['Dsw'] else CFG['D2'])
        g_ = max(g_, avail[n])
        if n:
            g_ = max(g_, prev_g)
        prev_g = g_
        assert g_ < 8 + n - (1 if piped(n) else 0)
        sched.setdefault(g_, []).append(n)

    e(f's_cmp_eq_u32 s{sWAVE}, 7')
    e('s_cbranch_scc1 L_k1_loader')

    XD = DK
    XA = LACC
    e(f's_lshl_b32 s50, s{sWAVE}, 4')
    e('v_lshlrev_b32 v9, 1, v3')
    e('v_xor_b32 v9, v9, v4')
    e('v_add_u32 v8, s50, v3')
    e('v_lshlrev_b32 v8, 10, v8')
    e('v_lshl_add_u32 v8, v9, 4, v8')
    def ff(i):
        return (((i & 7) ^ ((i >> 3) << 2)) << 1) | (i >> 3)
    for p_ in range(4):
        e(f'v_xor_b32 v{XD + p_}, {ff(4 * p_) * 16}, v8')
    sXM = 51
    e(f's_lshl_b32 s{sXM}, s{sWAVE}, 13')

    def xdma(r):
        for it in range(2):
            for p_ in range(4):
                e(f's_add_u32 m0, s{sXM}, {it * 4096 + p_ * 1024}')
                e(f's_mov_b32 s{sSOFF}, {it * 4 * 114688 + p_ * 4096 + r * 256}')
                e(f'buffer_load_dwordx4 v{XD + p_}, s[{sX}:{sX + 3}], s{sSOFF} offen{xmod} lds', tag=('x', r))
    xdma(0)
    e('v_and_b32 v8, 1, v5')
    e('v_lshrrev_b32 v9, 1, v5')
    e('v_lshl_or_b32 v8, v9, 2, v8')
    e('v_and_b32 v9, 1, v3')
    e('v_lshl_or_b32 v8, v9, 3, v8')
    e('v_xor_b32 v8, v8, v6')
    e('v_lshlrev_b32 v8, 4, v8')
    e('v_and_b32 v10, 1, v6')
    e('v_lshl_or_b32 v8, v10, 3, v8')
    e(f'v_cmp_eq_u32_e64 s[{sMASK}:{sMASK + 1}], 1, v9')
    e('v_lshl_add_u32 v10, v3, 3, v5')
    e('v_lshl_add_u32 v10, v10, 8, v8')
    e('v_add_u32 v10, 114688, v10')
    for ks in range(4):
        for t in range(2):
            e(f'v_xor_b32 v{VADDR + 2 * ks + t}, {64 * ks + 8 * t}, v10')
    e('v_lshl_add_u32 v10, v3, 2, v5')
    e(f'v_lshl_add_u32 v{VLOW}, v10, 8, v8')
    e('v_lshrrev_b32 v9, 3, v4')
    e('v_and_b32 v10, 7, v4')
    e('v_lshlrev_b32 v11, 2, v9')
    e('v_xor_b32 v10, v10, v11')
    e('v_lshl_or_b32 v10, v10, 1, v9')
    e('v_xor_b32 v10, v10, v3')
    e('v_lshlrev_b32 v10, 4, v10')
    e('v_lshl_add_u32 v10, v4, 8, v10')
    for ks in range(4):
        e(f'v_xor_b32 v{KADDR + ks}, {64 * ks}, v10')
        e(f'v_add_u32 v{XA + ks}, s{sXM}, v{KADDR + ks}')
    e(f's_lshl_b32 s50, s{sWAVE}, 17')
    e('v_lshlrev_b32 v9, 4, v2')
    e(f'v_add_u32 v{VT2}, s50, v9')
    for k in range(4):
        e(f'v_mov_b32 v{ONES + k}, 0x3f803f80')

    def xread(r):
        P.wait_tag(('x', r))
        for s_ in range(4):
            for it in range(2):
                dst = ((r * 4 + s_) * 2 + it) * 4
                e(f'ds_read_b128 {v(dst, 4)}, v{XA + s_} offset:{it * 4096}')
        P.wait_lgkm(0)
        if r < 3:
            xdma(r + 1)

    xread(0)

    for j in range(8):
        P.comment(f'W step {j}')
        e('s_barrier')
        if 1 <= j <= 3:
            xread(j)
        slot_off = (j % 3) * 16384
        seq = []
        for kk in range(2):
            for ks in range(4):
                for t in range(2):
                    idx = (kk * 8 + ks * 2 + t)
                    fr = FR + (idx % 8) * 4
                    a = VADDR + 2 * ks + t
                    off = slot_off + kk * 8192
                    rd = [f'ds_read_b64_tr_b16 {v(fr, 2)}, v{a} offset:{off}',
                          f'ds_read_b64_tr_b16 {v(fr + 2, 2)}, v{a} offset:{off + 1024}']
                    mm = []
                    for it in range(2):
                        acc = Qf(it, ks) + 4 * t
                        xb = ((2 * j + kk) * 2 + it) * 4
                        c = '0' if (j == 0 and kk == 0) else v(acc, 4)
                        mm.append(f'{MFMA} {v(acc, 4)}, {v(fr, 4)}, {v(xb, 4)}, {c}')
                    seq.append((rd, mm))
        AHEAD = 6
        for i in range(AHEAD):
            for x in seq[i][0]:
                e(x)
        for i in range(16):
            for x in seq[i][1]:
                e(x)
            if i + AHEAD < 16:
                for x in seq[i + AHEAD][0]:
                    e(x)
    qconv = []
    for it in range(2):
        for ks in range(4):
            q0, q1 = Qf(it, ks), Qf(it, ks) + 4
            qconv += [f'v_cvt_pk_bf16_f32 v{q1}, v{q1}, v{q1 + 1}',
                      f'v_cvt_pk_bf16_f32 v{q1 + 1}, v{q1 + 2}, v{q1 + 3}',
                      f'v_cvt_pk_bf16_f32 v{q1 + 2}, v{q0}, v{q0 + 1}',
                      f'v_cvt_pk_bf16_f32 v{q1 + 3}, v{q0 + 2}, v{q0 + 3}',
                      f'v_cndmask_b32_e64 v{q0}, v{q1 + 2}, v{q1}, s[{sMASK}:{sMASK + 1}]',
                      f'v_cndmask_b32_e64 v{q0 + 1}, v{q1 + 3}, v{q1 + 1}, s[{sMASK}:{sMASK + 1}]',
                      f'v_cndmask_b32_e64 v{q0 + 2}, v{q1}, v{q1 + 2}, s[{sMASK}:{sMASK + 1}]',
                      f'v_cndmask_b32_e64 v{q0 + 3}, v{q1 + 1}, v{q1 + 3}, s[{sMASK}:{sMASK + 1}]']
    for ee in range(4):
        for t in range(2):
            qconv.append(f'v_xor_b32 v{VADDR + 2 * ee + t}, {64 * ee + 8 * t}, v{VLOW}')
    qconv.append(f'v_mov_b32 v{VOFF}, v{VT2}')

    win = {'k': 0, 'v': 0}

    def set_window(which, slot):
        w = slot >> 2
        out = []
        if w != win[which]:
            d = (w - win[which]) * 65536
            regs = range(KADDR, KADDR + 4) if which == 'k' else range(VADDR, VADDR + 8)
            for r_ in regs:
                if d > 0:
                    out.append(f'v_add_u32 v{r_}, {d}, v{r_}')
                else:
                    out.append(f'v_subrev_u32 v{r_}, {-d}, v{r_}')
            win[which] = w
        return out

    def max_stream(t, first):
        b = S0 + t * 16
        out = []
        vals = list(range(b, b + 16))
        if first:
            out.append(f'v_max3_f32 v{VM}, v{vals[0]}, v{vals[1]}, v{vals[2]}')
            out.append(f'v_max_f32 v{VM}, v{VM}, v{vals[3]}')
            vals = vals[4:]
        for k in range(0, len(vals), 2):
            out.append(f'v_max3_f32 v{VM}, v{VM}, v{vals[k]}, v{vals[k + 1]}')
        return out

    def exp_stream(t):
        b = S0 + t * 16
        out = []
        for u in range(2):
            bb = b + 8 * u
            for k in range(8):
                out.append(f'v_fma_f32 v{bb + k}, v{bb + k}, s{sC}, -v{VMC}')
            for k in range(8):
                out.append(f'v_exp_f32 v{bb + k}, v{bb + k}')
            for k in range(4):
                out.append(f'v_cvt_pk_bf16_f32 v{bb + k}, v{bb + 2 * k}, v{bb + 2 * k + 1}')
        return out

    def epilogue(it):
        out = [f'v_rcp_f32 v{VT}, v{LACC}']
        so = f's{sOIT}' if it else '0'
        smod = (' ' + CFG['store_mod']) if CFG['store_mod'] else ''
        for ee in range(4):
            o0, o1 = Oacc(ee, 0), Oacc(ee, 1)
            for k in range(4):
                out.append(f'v_mul_f32 v{o0 + k}, v{o0 + k}, v{VT}')
            for k in range(4):
                out.append(f'v_mul_f32 v{o1 + k}, v{o1 + k}, v{VT}')
            out += [f'v_cvt_pk_bf16_f32 v{o0}, v{o0}, v{o0 + 1}',
                    f'v_cvt_pk_bf16_f32 v{o0 + 1}, v{o0 + 2}, v{o0 + 3}',
                    f'v_cvt_pk_bf16_f32 v{o0 + 2}, v{o1}, v{o1 + 1}',
                    f'v_cvt_pk_bf16_f32 v{o0 + 3}, v{o1 + 2}, v{o1 + 3}',
                    f'v_cndmask_b32_e64 v{o1}, v{o0}, v{o0 + 2}, s[{sMASK}:{sMASK + 1}]',
                    f'v_cndmask_b32_e64 v{o1 + 1}, v{o0 + 1}, v{o0 + 3}, s[{sMASK}:{sMASK + 1}]',
                    f'v_cndmask_b32_e64 v{o1 + 2}, v{o0 + 2}, v{o0}, s[{sMASK}:{sMASK + 1}]',
                    f'v_cndmask_b32_e64 v{o1 + 3}, v{o0 + 3}, v{o0 + 1}, s[{sMASK}:{sMASK + 1}]',
                    f'buffer_store_dwordx4 {v(o1, 4)}, v{VOFF}, s[{sO}:{sO + 3}], {so} offen offset:{ee * 1024}{smod}']
        return out

    def k_seq(n):
        it, t = n >> 4, n & 7
        slot = kvslot(n)
        so = (slot & 3) * 16384
        seq = []
        for kt in range(4):
            for ks in range(4):
                idx = kt * 4 + ks
                fr = FR + (idx % 8) * 4
                rd = [f'ds_read_b128 {v(fr, 4)}, v{KADDR + ks} offset:{so + kt * 4096}']
                acc = S0 + t * 16 + kt * 4
                c = '0' if ks == 0 else v(acc, 4)
                seq.append((rd, [f'{MFMA} {v(acc, 4)}, {v(fr, 4)}, {v(Qf(it, ks), 4)}, {c}']))
        return seq

    def v_seq(n):
        it, t = n >> 4, n & 7
        slot = kvslot(n)
        so = (slot & 3) * 16384
        seq = []
        for u in range(2):
            pb = S0 + t * 16 + 8 * u
            for ee in range(4):
                for tt in range(2):
                    idx = u * 8 + ee * 2 + tt
                    fr = FR + (idx % 8) * 4
                    a = VADDR + 2 * ee + tt
                    off = so + u * 8192
                    rd = [f'ds_read_b64_tr_b16 {v(fr, 2)}, v{a} offset:{off}',
                          f'ds_read_b64_tr_b16 {v(fr + 2, 2)}, v{a} offset:{off + 4096}']
                    acc = Oacc(ee, tt)
                    c = '0' if (t == 0 and u == 0) else v(acc, 4)
                    mm = [f'{MFMA} {v(acc, 4)}, {v(fr, 4)}, {v(pb, 4)}, {c}']
                    if ee == 3 and tt == 1:
                        c = '0' if (t == 0 and u == 0) else v(LACC, 4)
                        mm.append(f'{MFMA} {v(LACC, 4)}, {v(ONES, 4)}, {v(pb, 4)}, {c}')
                    seq.append((rd, mm))
        return seq

    def isv(n):
        return (n >> 3) & 1

    pending = qconv
    AH = CFG['ah']
    seqs = [v_seq(n) if isv(n) else k_seq(n) for n in range(32)]
    pre_done = 0
    for n in range(32):
        it, t = n >> 4, n & 7
        e('s_barrier')
        sq = seqs[n]
        head = []
        if pre_done == 0:
            if n == 0:
                for x in pending:
                    e(x)
                pending = []
            head = set_window('v' if isv(n) else 'k', kvslot(n)) + [x for i in range(AH) for x in sq[i][0]]
        for x in head:
            e(x)
        nxt = piped(n + 1)
        main = []
        for i in range(16):
            main += sq[i][1]
            if i + AH < 16:
                main += sq[i + AH][0]
            elif nxt:
                if i + AH == 16:
                    main += set_window('v' if isv(n + 1) else 'k', kvslot(n + 1))
                main += seqs[n + 1][i + AH - 16][0]
        pre_done = AH if nxt else 0
        if not isv(n):
            side = pending + (max_stream(t - 1, t == 1) if t >= 1 else [])
            pending = []
        else:
            if t == 0:
                for x in max_stream(7, False):
                    e(x)
                e(f'v_mov_b32 v{VT}, v{VM}')
                e(f'v_permlane32_swap_b32 v{VM}, v{VT}')
                e(f'v_max_f32 v{VM}, v{VM}, v{VT}')
                e(f'v_mov_b32 v{VT}, v{VM}')
                e(f'v_permlane16_swap_b32 v{VM}, v{VT}')
                e(f'v_max_f32 v{VM}, v{VM}, v{VT}')
                e(f'v_mul_f32 v{VMC}, s{sC}, v{VM}')
                for x in exp_stream(0):
                    e(x)
            side = exp_stream(t + 1) if t < 7 else []
        for x in merge(main, side):
            e(x)
        if isv(n) and t == 7:
            pending = epilogue(it)
    for x in pending:
        e(x)
    if CFG['prof']:
        e('s_waitcnt vmcnt(0)')
        e('s_barrier')
    e('s_endpgm')

    L = Prog()
    L.label('L_k1_loader')
    def stamp(reg, idx, real=False):
        if CFG['prof']:
            L.raw('  s_memrealtime s[60:61]' if real else '  s_memtime s[60:61]')
            L.raw('  s_waitcnt lgkmcnt(0)')
            L.raw(f'  v_writelane_b32 v{reg}, s60, {idx}')
    stamp(12, 0, True)
    stamp(12, 1)
    if CFG['spin1'] or CFG['spin1c']:
        L.raw('  s_memrealtime s[70:71]' if CFG['spin1'] else '  s_memtime s[70:71]')
        L.raw('  s_waitcnt lgkmcnt(0)')
    le = L.emit
    for c in range(4):
        a_, m_ = c >> 1, c & 1
        le(f'v_xor_b32 v8, {a_ << 3}, v7')
        le('v_xor_b32 v8, v8, v4')
        le('v_lshlrev_b32 v8, 4, v8')
        le('v_lshl_add_u32 v8, v3, 13, v8')
        le(f'v_add_u32 v{LW + c}, {c * (32768 - 1024)}, v8')
    dma_w(L, 0)
    for c in range(4):
        a_, m_ = c >> 1, c & 1
        le(f'v_xor_b32 v8, {(4 * m_) ^ (4 * a_)}, v3')
        le(f'v_lshlrev_b32 v8, 1, v8')
        le(f'v_or_b32 v8, {a_}, v8')
        le('v_xor_b32 v8, v8, v4')
        le('v_lshlrev_b32 v8, 4, v8')
        le(f'v_lshl_add_u32 v{LK + c}, v3, 8, v8')
    for m_ in range(2):
        le(f'v_xor_b32 v8, {m_ << 3}, v7')
        le('v_xor_b32 v8, v8, v4')
        le('v_lshlrev_b32 v8, 4, v8')
        le(f'v_lshl_add_u32 v{LV + m_}, v3, 8, v8')
    dma_w(L, 1)
    dma_w(L, 2)
    pf_done = 0
    pfmod = (' ' + CFG['pf_mod']) if CFG['pf_mod'] else ''
    TP = CFG['k2v'] == 2
    if CFG['pf']:
        le('s_lshl_b32 s50, s47, 17')
        le('s_lshl_b32 s51, s48, 15')
        le('s_add_u32 s50, s50, s51')
        le('s_add_u32 s52, s14, s50')
        le('s_addc_u32 s53, s15, 0')
        le('s_mov_b32 s54, 32768')
        le('s_mov_b32 s55, 0x20000')
        le('v_lshlrev_b32 v32, 4, v2')
    if TP:
        tslot = [kvslot(22), kvslot(23)]
        for c in range(4):
            le(f'v_xor_b32 v{33 + c}, {c << 6}, v32')
        le('s_lshr_b32 s50, s50, 4')
        le('s_sub_u32 s58, 0x400000, s50')
        le('s_lshl_b32 s51, s45, 22')
        le('s_add_u32 s50, s50, s51')
        le('s_add_u32 s50, s50, 0x1000000')
        le('s_add_u32 s56, s12, s50')
        le('s_addc_u32 s57, s13, 0')
        le('s_mov_b32 s59, 0x20000')
        le('v_and_b32 v8, 1, v3')
        le('v_lshl_add_u32 v8, v8, 3, v5')
        le('v_lshlrev_b32 v8, 10, v8')
        le('v_lshl_add_u32 v8, v6, 4, v8')
        le('v_lshl_add_u32 v8, v5, 6, v8')
        le(f'v_mov_b32 v9, {tslot[0] * 16384}')
        le(f'v_mov_b32 v37, {tslot[1] * 16384}')
        le('v_cmp_gt_u32 vcc, 2, v3')
        le('v_cndmask_b32 v9, v37, v9, vcc')
        le('v_add_u32 v8, v8, v9')
        for p2 in range(4):
            le(f'v_xor_b32 v{37 + p2}, {p2 << 6}, v8')
    for n in sched.get(-1, []):
        dma_kv(L, n)
    for j in range(8):
        L.wait_tag(('w', j))
        stamp(11, j)
        L.emit('s_barrier')
        stamp(10, j)
        if 1 <= j <= 5:
            dma_w(L, j + 2)
        for n in sched.get(j, []):
            dma_kv(L, n)
    for n in range(32):
        L.wait_tag(('kv', n))
        if piped(n + 1):
            L.wait_tag(('kv', n + 1))
        stamp(11, 8 + n)
        L.emit('s_barrier')
        stamp(10, 8 + n)
        for n2 in sched.get(8 + n, []):
            dma_kv(L, n2)
        if CFG['pf'] and n >= CFG['pf'] and pf_done < 32:
            assert n >= 24
            outst = sum(1 for k_, _, _ in L.vm if k_ == 'l') - 16
            cnt = max(0, min(32 - pf_done, (63 - outst) // 4 * 4)) if n < min(31, CFG['tpw']) else 32 - pf_done
            for q in range(pf_done, pf_done + cnt):
                if q % 4 == 0:
                    le(f's_mov_b32 s{sSOFF}, {q * 1024}')
                    if TP:
                        le(f's_mov_b32 m0, {tslot[q >> 4] * 16384 + (q & 15) * 1024}')
                if TP:
                    le(f'buffer_load_dwordx4 v{33 + q % 4}, s[52:55], s{sSOFF} offen offset:{(q % 4) * 1024}{pfmod} lds', tag='wo')
                else:
                    le(f'buffer_load_dwordx4 {v(64 + q * 4, 4)}, v32, s[52:55], s{sSOFF} offen offset:{(q % 4) * 1024}{pfmod}')
            pf_done += cnt
        if TP and n == CFG['tpw']:
            assert pf_done == 32
            L.wait_tag('wo')
            for p in range(16):
                for t in range(2):
                    for kk in range(2):
                        le(f'ds_read_b64_tr_b16 {v(64 + (p * 2 + t) * 4 + kk * 2, 2)}, v{37 + (p & 3)} offset:{(p >> 2) * 256 + kk * 4096 + t * 8}')
            for p in range(16):
                le(f's_mov_b32 s{sSOFF}, {p * 262144}')
                for t in range(2):
                    le(f'buffer_store_dwordx4 {v(64 + (p * 2 + t) * 4, 4)}, v32, s[56:59], s{sSOFF} offen offset:{t * 1024}')
    if CFG['pf']:
        L.wait_vm_all()
    if CFG['prof']:
        L.emit('s_barrier')
        stamp(10, 40)
        stamp(12, 2, True)
        stamp(12, 3)
        L.emit('s_lshl_b32 s50, s2, 10')
        L.emit('s_add_u32 s50, s50, 0x4000000')
        L.emit('s_add_u32 s64, s12, s50')
        L.emit('s_addc_u32 s65, s13, 0')
        L.emit('s_mov_b32 s66, 1024')
        L.emit('s_mov_b32 s67, 0x20000')
        L.emit('v_lshlrev_b32 v13, 2, v2')
        L.emit('buffer_store_dword v10, v13, s[64:67], 0 offen')
        L.emit('buffer_store_dword v11, v13, s[64:67], 0 offen offset:256')
        L.emit('buffer_store_dword v12, v13, s[64:67], 0 offen offset:512')
    if CFG['spin1'] or CFG['spin1c']:
        L.raw('  s_cmp_lg_u32 s2, 0')
        L.raw('  s_cbranch_scc1 L_k1_done')
        L.label('L_k1_spin')
        L.raw('  s_memrealtime s[72:73]' if CFG['spin1'] else '  s_memtime s[72:73]')
        L.raw('  s_waitcnt lgkmcnt(0)')
        L.raw('  s_sub_u32 s72, s72, s70')
        L.raw(f'  s_cmp_lt_u32 s72, {CFG["spin1"] or CFG["spin1c"]}')
        L.raw('  s_cbranch_scc1 L_k1_spin')
    L.label('L_k1_done')
    L.emit('s_endpgm')
    return P.text() + L.text()


def gen_k2():
    D = CFG['k2_depth']
    P = Prog()
    e = P.emit
    ACC = 0
    OF = 64
    AF = OF + D * 16
    TA = AF + 32
    DW = TA + 4
    VO = DW + 2
    VR = VO + 1
    VS = VR + 1
    sOs, sWo, sD = 16, 20, 24
    sWV, sM0, sT, sT2, sMK = 36, 37, 38, 39, 42

    def acc(qq, ee, t):
        return ACC + ((qq * 2 + ee) * 2 + t) * 4

    P.raw('.p2align 8')
    P.raw('.type oproj_kernel,@function')
    P.label('oproj_kernel')
    e('s_cmp_ge_u32 s2, 224')
    e('s_cbranch_scc1 L_k2_done')
    if CFG['spin2']:
        P.raw('  s_memrealtime s[70:71]')
    if CFG['prof'] == 2:
        P.raw('  s_memrealtime s[70:71]')
        P.raw('  s_load_dwordx2 s[64:65], s[0:1], 88')
    e('s_and_b32 s3, s2, 7')
    e('s_lshr_b32 s44, s2, 3')
    e('s_lshr_b32 s45, s3, 2')
    e('s_mul_i32 s46, s45, 40')
    e('s_add_u32 s46, s46, 32')
    e('s_load_dwordx2 s[4:5], s[0:1], s46')
    e('s_load_dwordx2 s[6:7], s[0:1], 80')
    e('s_load_dwordx2 s[8:9], s[0:1], 96')
    e('s_mul_i32 s47, s44, 37')
    e('s_lshr_b32 s47, s47, 8')
    e('s_mul_i32 s48, s47, 7')
    e('s_sub_u32 s48, s44, s48')
    e('s_bfe_u32 s49, s3, 0x10001')
    e('s_mul_i32 s49, s49, 7')
    e('s_add_u32 s48, s48, s49')
    e('s_and_b32 s49, s3, 1')
    e('s_lshl_b32 s49, s49, 2')
    e('s_add_u32 s47, s47, s49')
    t0 = 200
    e(f'v_lshrrev_b32 v{t0}, 6, v0')
    e(f'v_and_b32 v{t0 + 1}, 63, v0')
    e(f'v_readfirstlane_b32 s{sWV}, v{t0}')
    L_, G_, I_, R_, C_ = t0 + 1, t0 + 2, t0 + 3, t0 + 4, t0 + 5
    e(f'v_lshrrev_b32 v{G_}, 4, v{L_}')
    e(f'v_and_b32 v{I_}, 15, v{L_}')
    e(f'v_bfe_u32 v{R_}, v{L_}, 2, 2')
    e(f'v_and_b32 v{C_}, 3, v{L_}')
    e(f's_mul_i32 s{sM0}, s{sWV}, {D * 4096}')
    a_, b_, c_ = t0 + 6, t0 + 7, t0 + 8
    e(f's_lshl_b32 s50, s{sWV}, 14')
    e(f'v_lshlrev_b32 v{a_}, 4, v{L_}')
    e(f'v_add_u32 v{VO}, s50, v{a_}')
    e(f'v_lshrrev_b32 v{a_}, 3, v{L_}')
    e(f'v_bfe_u32 v{b_}, v{L_}, 4, 1')
    e(f'v_and_b32 v{c_}, 7, v{L_}')
    e(f'v_xor_b32 v{b_}, v{b_}, v{c_}')
    e(f'v_lshlrev_b32 v{b_}, 4, v{b_}')
    e(f'v_lshl_add_u32 v{a_}, v{a_}, 10, v{b_}')
    e(f's_lshl_b32 s50, s{sWV}, 19')
    e(f'v_add_u32 v{DW}, s50, v{a_}')
    e(f'v_xor_b32 v{DW + 1}, 64, v{DW}')
    e(f'v_add_u32 v{DW + 1}, {8192 - 1024}, v{DW + 1}')
    e(f'v_lshrrev_b32 v{a_}, 1, v{R_}')
    e(f'v_and_b32 v{b_}, 1, v{G_}')
    e(f'v_cmp_eq_u32_e64 s[{sMK}:{sMK + 1}], 1, v{b_}')
    e(f'v_lshl_or_b32 v{a_}, v{b_}, 2, v{a_}')
    e(f'v_xor_b32 v{a_}, v{a_}, v{C_}')
    e(f'v_lshlrev_b32 v{a_}, 4, v{a_}')
    e(f'v_and_b32 v{b_}, 1, v{C_}')
    e(f'v_lshl_or_b32 v{a_}, v{b_}, 3, v{a_}')
    e(f'v_lshl_add_u32 v{b_}, v{G_}, 3, v{R_}')
    e(f'v_lshl_add_u32 v{a_}, v{b_}, 7, v{a_}')
    e(f'v_add_u32 v{a_}, s{sM0}, v{a_}')
    for ee in range(2):
        for t in range(2):
            e(f'v_xor_b32 v{TA + 2 * ee + t}, {64 * ee + 8 * t}, v{a_}')
    e(f'v_lshlrev_b32 v{a_}, 4, v{L_}')
    e(f's_lshl_b32 s50, s{sWV}, 11')
    e(f'v_add_u32 v{VR}, s50, v{a_}')
    e(f's_lshr_b32 s50, s{sWV}, 1')
    e('s_lshl_b32 s50, s50, 15')
    e(f's_and_b32 s51, s{sWV}, 1')
    e('s_lshl_b32 s51, s51, 6')
    e('s_add_u32 s50, s50, s51')
    e(f'v_lshlrev_b32 v{a_}, 11, v{I_}')
    e(f'v_lshl_add_u32 v{a_}, v{G_}, 4, v{a_}')
    e(f'v_add_u32 v{VS}, s50, v{a_}')
    e('s_waitcnt lgkmcnt(0)')
    e('s_mul_i32 s50, s45, 56')
    e('s_lshl_b32 s51, s48, 2')
    e('s_add_u32 s50, s50, s51')
    e('s_lshl_b32 s50, s50, 17')
    e(f's_add_u32 s{sOs}, s8, s50')
    e(f's_addc_u32 s{sOs + 1}, s9, 0')
    e(f's_mov_b32 s{sOs + 2}, {4 * 131072}')
    e(f's_mov_b32 s{sOs + 3}, 0x20000')
    e('s_lshl_b32 s50, s47, 7')
    e(f's_add_u32 s{sWo}, s4, s50')
    e(f's_addc_u32 s{sWo + 1}, s5, 0')
    e(f's_sub_u32 s{sWo + 2}, 0x400000, s50')
    e(f's_mov_b32 s{sWo + 3}, 0x20000')
    e('s_lshl_b32 s50, s48, 17')
    e('s_lshl_b32 s51, s45, 10')
    e('s_add_u32 s50, s50, s51')
    e('s_lshl_b32 s51, s47, 7')
    e('s_add_u32 s50, s50, s51')
    e(f's_add_u32 s{sD}, s6, s50')
    e(f's_addc_u32 s{sD + 1}, s7, 0')
    e(f's_sub_u32 s{sD + 2}, {896 * 2048}, s50')
    e(f's_mov_b32 s{sD + 3}, 0x20000')

    def issue(kk):
        st = kk % D
        e(f's_add_u32 m0, s{sM0}, {st * 4096}')
        e(f's_mov_b32 s{sT}, {kk * 32768}')
        e(f's_mov_b32 s{sT2}, {kk * 32768 + 16384 - 2048}')
        for m in range(4):
            so = sT if m < 2 else sT2
            e(f'buffer_load_dwordx4 v{DW + (m & 1)}, s[{sWo}:{sWo + 3}], s{so} offen offset:{m * 1024} lds', tag=('wo', kk))
        for qq in range(4):
            e(f's_mov_b32 s{sT}, {qq * 131072 + (kk >> 2) * 4096}')
            e(f'buffer_load_dwordx4 {v(OF + st * 16 + qq * 4, 4)}, v{VO}, s[{sOs}:{sOs + 3}], s{sT} offen offset:{(kk & 3) * 1024}')

    def reads(kk):
        st = kk % D
        out = []
        for ee in range(2):
            for t in range(2):
                fr = AF + (kk & 1) * 16 + (ee * 2 + t) * 4
                out += [f'ds_read_b64_tr_b16 {v(fr, 2)}, v{TA + 2 * ee + t} offset:{st * 4096}',
                        f'ds_read_b64_tr_b16 {v(fr + 2, 2)}, v{TA + 2 * ee + t} offset:{st * 4096 + 512}']
        return out

    for kk in range(D):
        issue(kk)
    P.wait_tag(('wo', 0))
    for x in reads(0):
        e(x)
    for kk in range(16):
        st = kk % D
        if kk + 1 < 16:
            P.wait_tag(('wo', kk + 1))
            for x in reads(kk + 1):
                e(x)
        for ee in range(2):
            for t in range(2):
                fr = AF + (kk & 1) * 16 + (ee * 2 + t) * 4
                for qq in range(4):
                    a = acc(qq, ee, t)
                    c = '0' if kk == 0 else v(a, 4)
                    e(f'{MFMA} {v(a, 4)}, {v(fr, 4)}, {v(OF + st * 16 + qq * 4, 4)}, {c}')
        if kk + D < 16:
            issue(kk + D)
    e('s_barrier')
    e(f'v_lshlrev_b32 v{TA}, 3, v{VR}')
    e(f'v_and_b32 v{TA + 1}, 0x3ff, v{VR}')
    e(f'v_and_b32 v{TA}, 0xffffc000, v{TA}')
    e(f'v_or_b32 v{TA}, v{TA}, v{TA + 1}')
    for tl in range(16):
        e(f'ds_write_b128 v{TA}, {v(ACC + tl * 4, 4)} offset:{tl * 1024}')
    P.wait_lgkm(0)
    e('s_barrier')
    RB = 64
    e(f'v_add_u32 v{TA + 2}, 65536, v{VR}')
    for p in range(8):
        for t in range(2):
            a = VR if p < 4 else TA + 2
            e(f'ds_read_b128 {v(RB + (p * 2 + t) * 4, 4)}, v{a} offset:{(p & 3) * 16384 + t * 1024}')
    for p in range(1, 8):
        for k in range(8):
            e(f'v_add_f32 v{RB + k}, v{RB + k}, v{RB + p * 8 + k}')
    o0, o1 = RB, RB + 4
    for x in [f'v_cvt_pk_bf16_f32 v{o0}, v{o0}, v{o0 + 1}',
              f'v_cvt_pk_bf16_f32 v{o0 + 1}, v{o0 + 2}, v{o0 + 3}',
              f'v_cvt_pk_bf16_f32 v{o0 + 2}, v{o1}, v{o1 + 1}',
              f'v_cvt_pk_bf16_f32 v{o0 + 3}, v{o1 + 2}, v{o1 + 3}',
              f'v_cndmask_b32_e64 v{o1}, v{o0}, v{o0 + 2}, s[{sMK}:{sMK + 1}]',
              f'v_cndmask_b32_e64 v{o1 + 1}, v{o0 + 1}, v{o0 + 3}, s[{sMK}:{sMK + 1}]',
              f'v_cndmask_b32_e64 v{o1 + 2}, v{o0 + 2}, v{o0}, s[{sMK}:{sMK + 1}]',
              f'v_cndmask_b32_e64 v{o1 + 3}, v{o0 + 3}, v{o0 + 1}, s[{sMK}:{sMK + 1}]',
              f'buffer_store_dwordx4 {v(o1, 4)}, v{VS}, s[{sD}:{sD + 3}], 0 offen']:
        e(x)
    if CFG['prof'] == 2:
        P.raw('  s_waitcnt vmcnt(0)')
        P.raw('  s_barrier')
        P.raw('  s_memrealtime s[72:73]')
        P.raw('  s_waitcnt lgkmcnt(0)')
        P.raw(f'  s_cmp_lg_u32 s{sWV}, 0')
        P.raw('  s_cbranch_scc1 L_k2_done')
        P.raw('  s_mov_b32 s66, 256')
        P.raw('  s_mov_b32 s67, 0x20000')
        P.raw('  s_not_b32 s70, s70')
        P.raw('  v_mov_b32 v14, s70')
        P.raw('  v_mov_b32 v15, s72')
        P.raw('  v_mov_b32 v16, 0')
        P.raw('  s_mov_b64 exec, 1')
        P.raw('  buffer_atomic_umax v14, v16, s[64:67], 0 offen offset:8')
        P.raw('  buffer_atomic_umax v15, v16, s[64:67], 0 offen offset:12')
        P.raw('  s_mov_b64 exec, -1')
        P.raw('  s_cmp_lg_u32 s2, 0')
        P.raw('  s_cbranch_scc1 L_k2_done')
        P.raw('  s_add_u32 s76, s8, 0x4000000')
        P.raw('  s_addc_u32 s77, s9, 0')
        P.raw('  s_mov_b32 s78, 0x40000')
        P.raw('  s_mov_b32 s79, 0x20000')
        P.raw('  v_lshlrev_b32 v17, 10, v201')
        for q in range(4):
            P.raw(f'  s_mov_b32 s50, {q * 65536}')
            P.raw(f'  buffer_load_dwordx4 v[20:23], v17, s[76:79], s50 offen offset:512')
            P.raw('  s_waitcnt vmcnt(0)')
            P.raw('  v_not_b32 v20, v20')
            P.raw('  buffer_atomic_umax v20, v16, s[64:67], 0 offen')
            P.raw('  buffer_atomic_umax v22, v16, s[64:67], 0 offen offset:4')
            P.raw('  s_waitcnt vmcnt(0)')
        P.raw('  v_lshlrev_b32 v17, 4, v201')
        P.raw('  buffer_load_dword v20, v17, s[76:79], 0 offen')
        P.raw('  buffer_load_dword v21, v16, s[76:79], 0 offen offset:516')
        P.raw('  s_waitcnt vmcnt(0)')
        P.raw('  v_sub_u32 v20, v20, v21')
        P.raw('  v_lshlrev_b32 v17, 2, v201')
        P.raw('  s_mov_b64 exec, 0x7ff')
        P.raw('  buffer_store_dword v20, v17, s[64:67], 0 offen offset:16')
    if CFG['spin2']:
        P.raw('  s_cmp_lg_u32 s2, 0')
        P.raw('  s_cbranch_scc1 L_k2_done')
        P.raw(f'  s_cmp_lg_u32 s{sWV}, 0')
        P.raw('  s_cbranch_scc1 L_k2_done')
        P.label('L_k2_spin')
        P.raw('  s_memrealtime s[72:73]')
        P.raw('  s_waitcnt lgkmcnt(0)')
        P.raw('  s_sub_u32 s72, s72, s70')
        P.raw(f'  s_cmp_lt_u32 s72, {CFG["spin2"]}')
        P.raw('  s_cbranch_scc1 L_k2_spin')
    P.label('L_k2_done')
    e('s_endpgm')
    return P.text()


def gen_k2b():
    LA = CFG['la']
    R = 5
    P = Prog()
    e = P.emit
    ACC = 0
    WF = 64
    OFR = 192
    VL, VRD, VRW, VRR = 248, 249, 250, 251
    sOs, sWo, sD = 16, 20, 24
    sWV, sM0, sT, sKH = 36, 37, 38, 39
    psmod = (' ' + CFG['ps_mod']) if CFG['ps_mod'] else ''

    def acc(qt, t):
        return ACC + (qt * 2 + t) * 4

    P.raw('.p2align 8')
    P.raw('.type oproj_kernel,@function')
    P.label('oproj_kernel')
    e('s_cmp_ge_u32 s2, 256')
    e('s_cbranch_scc1 L_k2_done')
    if CFG['prof'] == 2:
        P.raw('  s_memrealtime s[70:71]')
    e('s_load_dwordx2 s[8:9], s[0:1], 96')
    e('v_lshrrev_b32 v1, 6, v0')
    e(f'v_readfirstlane_b32 s{sWV}, v1')
    e('v_and_b32 v2, 63, v0')
    e(f'v_lshlrev_b32 v{VL}, 4, v2')
    e('s_and_b32 s3, s2, 7')
    e('s_lshr_b32 s45, s3, 2')
    e('s_and_b32 s46, s3, 3')
    e('s_lshr_b32 s47, s2, 5')
    e('s_bfe_u32 s48, s2, 0x20003')
    e(f's_lshr_b32 s{sKH}, s{sWV}, 2')
    e(f's_and_b32 s49, s{sWV}, 3')
    e('s_lshl_b32 s50, s45, 3')
    e('s_add_u32 s50, s50, s47')
    e('s_mul_i32 s51, s50, 7')
    e(f's_add_u32 s51, s51, s{sWV}')
    e('s_lshl_b32 s51, s51, 17')
    e('s_lshl_b32 s52, s46, 15')
    e('s_add_u32 s51, s51, s52')
    e('s_lshl_b32 s52, s45, 4')
    e('s_lshl_b32 s53, s48, 2')
    e('s_add_u32 s52, s52, s53')
    e('s_add_u32 s52, s52, s49')
    e('s_lshl_b32 s52, s52, 18')
    e('s_lshl_b32 s53, s46, 16')
    e('s_add_u32 s52, s52, s53')
    e(f's_lshl_b32 s53, s{sKH}, 15')
    e('s_add_u32 s52, s52, s53')
    e('s_add_u32 s52, s52, 0x1000000')
    e('s_lshl_b32 s53, s50, 2')
    e('s_add_u32 s53, s53, s48')
    e('s_lshl_b32 s53, s53, 2')
    e('s_add_u32 s53, s53, s49')
    e('s_lshl_b32 s53, s53, 2')
    e('s_add_u32 s53, s53, s46')
    e('s_mul_i32 s53, s53, 14336')
    e('s_add_u32 s53, s53, 0x2000000')
    e(f's_lshl_b32 s{sM0}, s{sWV}, 11')
    e(f's_mul_i32 s54, s{sKH}, 14336')
    e(f'v_add_u32 v{VRD}, s54, v{VL}')
    e('s_waitcnt lgkmcnt(0)')
    e(f's_add_u32 s{sOs}, s8, s51')
    e(f's_addc_u32 s{sOs + 1}, s9, 0')
    e(f's_mov_b32 s{sOs + 2}, 32768')
    e(f's_mov_b32 s{sOs + 3}, 0x20000')
    e(f's_add_u32 s{sWo}, s8, s52')
    e(f's_addc_u32 s{sWo + 1}, s9, 0')
    e(f's_mov_b32 s{sWo + 2}, 32768')
    e(f's_mov_b32 s{sWo + 3}, 0x20000')
    e(f's_add_u32 s{sD}, s8, s53')
    e(f's_addc_u32 s{sD + 1}, s9, 0')
    e(f's_mov_b32 s{sD + 2}, 14336')
    e(f's_mov_b32 s{sD + 3}, 0x20000')
    e(f's_cmp_eq_u32 s{sWV}, 7')
    e('s_cbranch_scc1 L_k2_w7')

    def body(P, odma):
        e = P.emit

        def issue(st):
            out = []
            if odma:
                for kh in range(2):
                    out.append(f's_add_u32 m0, s{sM0}, {(st % R) * 28672 + kh * 14336}')
                    out.append(f's_mov_b32 s{sT}, {kh * 16384 + (st >> 1) * 4096 + (st & 1) * 2048}')
                    for c in range(2):
                        out.append(Ins(f'buffer_load_dwordx4 v{VL}, s[{sOs}:{sOs + 3}], s{sT} offen offset:{c * 1024} lds', tag=('o', st)))
            out.append(f's_mov_b32 s{sT}, {st * 4096}')
            for c in range(4):
                out.append(f'buffer_load_dwordx4 {v(WF + (st * 4 + c) * 4, 4)}, v{VL}, s[{sWo}:{sWo + 3}], s{sT} offen offset:{c * 1024}')
            return out

        for st in range(LA):
            for x in issue(st):
                e(x)
        for st in range(8):
            P.comment(f'step {st}')
            P.wait_tag(('o', st))
            e('s_barrier')
            base = (st % R) * 28672
            def rd(kk, qt):
                off = base + qt * 2048 + kk * 1024
                if off >= 65536:
                    return f'ds_read_b128 {v(OFR + kk * 28 + qt * 4, 4)}, v{VRR} offset:{off - 65536}'
                return f'ds_read_b128 {v(OFR + kk * 28 + qt * 4, 4)}, v{VRD} offset:{off}'
            mm = []
            for kk in range(2):
                for qt in range(7):
                    for t in range(2):
                        a = acc(qt, t)
                        c = '0' if (st == 0 and kk == 0) else v(a, 4)
                        mm.append(f'{MFMA} {v(a, 4)}, {v(WF + (st * 4 + kk * 2 + t) * 4, 4)}, {v(OFR + kk * 28 + qt * 4, 4)}, {c}')
            for qt in range(7):
                e(rd(0, qt))
            for qt in range(7):
                e(rd(1, qt))
            side = issue(st + LA) if st + LA < 8 else []
            for x in merge(mm, side):
                e(x)

    def tail(P):
        e = P.emit
        e('s_barrier')
        if CFG['prof'] == 2:
            P.raw('  s_memrealtime s[74:75]')
        e(f's_cmp_eq_u32 s{sKH}, 1')
        e('s_cbranch_scc1 L_k2_t1')
        for kh in range(2):
            if kh:
                P.label('L_k2_t1')
            snd = range(4, 7) if kh == 0 else range(0, 4)
            keep = range(0, 4) if kh == 0 else range(4, 7)
            for qt in snd:
                for t in range(2):
                    e(f'ds_write_b128 v{VRW}, {v(acc(qt, t), 4)} offset:{(qt * 2 + t) * 1024}')
            P.wait_lgkm(0)
            e('s_barrier')
            for qt in keep:
                for t in range(2):
                    e(f'ds_read_b128 {v(WF + (qt * 2 + t) * 4, 4)}, v{VRW} offset:{(qt * 2 + t) * 1024}')
            for qt in keep:
                e(f's_mov_b32 s{sT}, {qt * 2048}')
                for t in range(2):
                    a, b = acc(qt, t), WF + (qt * 2 + t) * 4
                    for k in range(0, 4, 2):
                        e(f'v_pk_add_f32 {v(a + k, 2)}, {v(a + k, 2)}, {v(b + k, 2)}')
                    e(f'buffer_store_dwordx4 {v(a, 4)}, v{VL}, s[{sD}:{sD + 3}], s{sT} offen offset:{t * 1024}{psmod}')
            if CFG['prof'] == 2 and kh == 0:
                for x in ['s_waitcnt vmcnt(0)', 's_memrealtime s[72:73]', 's_waitcnt lgkmcnt(0)', f's_cmp_lg_u32 s{sWV}, 0', 's_cbranch_scc1 L_k2_done',
                          's_lshl_b32 s50, s2, 4', 's_add_u32 s50, s50, 0x4100000', 's_add_u32 s64, s8, s50', 's_addc_u32 s65, s9, 0', 's_mov_b32 s66, 16', 's_mov_b32 s67, 0x20000',
                          'v_mov_b32 v14, s70', 'v_mov_b32 v15, s74', 'v_mov_b32 v16, s72', 'v_mov_b32 v17, 0', 'v_mov_b32 v18, 0', 's_mov_b64 exec, 1',
                          'buffer_store_dwordx4 v[14:17], v18, s[64:67], 0 offen']:
                    P.raw('  ' + x)
            e('s_endpgm')

    pre = [f'v_add_u32 v{VRR}, 65536, v{VRD}', 's_mul_i32 s54, s49, 14336', f'v_add_u32 v{VRW}, s54, v{VL}']
    for x in pre:
        e(x)
    body(P, True)
    e('s_branch L_k2_tail')
    Q = Prog()
    Q.label('L_k2_w7')
    for x in pre:
        Q.emit(x)
    body(Q, False)
    Q.emit('s_nop 7')
    Q.emit('s_nop 7')
    T = Prog()
    T.label('L_k2_tail')
    T.emit('s_nop 7')
    T.emit('s_nop 7')
    tail(T)
    T.label('L_k2_done')
    T.emit('s_endpgm')

    Z = Prog()
    z = Z.emit
    k3mod = (' ' + CFG['k3_mod']) if CFG['k3_mod'] else ''
    Z.raw('.p2align 8')
    Z.raw('.type red_kernel,@function')
    Z.label('red_kernel')
    z('s_cmp_ge_u32 s2, 256')
    z('s_cbranch_scc1 L_k3_done')
    if CFG['prof'] == 2:
        Z.raw('  s_memrealtime s[70:71]')
        Z.raw('  s_load_dwordx2 s[64:65], s[0:1], 88')
    z('s_load_dwordx2 s[8:9], s[0:1], 96')
    z('s_load_dwordx2 s[6:7], s[0:1], 80')
    z('v_lshrrev_b32 v1, 6, v0')
    z('v_readfirstlane_b32 s36, v1')
    z('v_and_b32 v2, 63, v0')
    z('v_lshlrev_b32 v3, 4, v2')
    z('v_and_b32 v4, 15, v2')
    z('v_lshrrev_b32 v5, 4, v2')
    z('v_lshlrev_b32 v4, 11, v4')
    z('v_lshl_add_u32 v4, v5, 4, v4')
    z('s_mul_i32 s50, s2, 57344')
    z('s_lshl_b32 s51, s36, 11')
    z('s_add_u32 s50, s50, s51')
    z('s_add_u32 s50, s50, 0x2000000')
    z('s_bfe_u32 s51, s2, 0x30004')
    z('s_mul_i32 s51, s51, 112')
    z('s_lshl_b32 s52, s36, 4')
    z('s_add_u32 s51, s51, s52')
    z('s_lshl_b32 s51, s51, 11')
    z('s_lshr_b32 s52, s2, 7')
    z('s_lshl_b32 s52, s52, 10')
    z('s_add_u32 s51, s51, s52')
    z('s_and_b32 s52, s2, 15')
    z('s_lshl_b32 s52, s52, 6')
    z('s_add_u32 s51, s51, s52')
    z('s_waitcnt lgkmcnt(0)')
    z('s_add_u32 s16, s8, s50')
    z('s_addc_u32 s17, s9, 0')
    z(f's_mov_b32 s18, {3 * 14336 + 2048}')
    z('s_mov_b32 s19, 0x20000')
    for kq in range(4):
        z(f's_mov_b32 s38, {kq * 14336}')
        for t in range(2):
            z(f'buffer_load_dwordx4 {v(8 + (kq * 2 + t) * 4, 4)}, v3, s[16:19], s38 offen offset:{t * 1024}{k3mod}')
    z('s_add_u32 s20, s6, s51')
    z('s_addc_u32 s21, s7, 0')
    z(f's_sub_u32 s22, {896 * 2048}, s51')
    z('s_mov_b32 s23, 0x20000')
    for kq in range(1, 4):
        for k in range(0, 8, 2):
            z(f'v_pk_add_f32 {v(8 + k, 2)}, {v(8 + k, 2)}, {v(8 + kq * 8 + k, 2)}')
    for k in range(4):
        z(f'v_cvt_pk_bf16_f32 v{8 + k}, v{8 + 2 * k}, v{9 + 2 * k}')
    z('buffer_store_dwordx4 v[8:11], v4, s[20:23], 0 offen')
    if CFG['prof'] == 2:
        L_ = ['s_waitcnt vmcnt(0)', 's_memrealtime s[72:73]', 's_waitcnt lgkmcnt(0)', 's_cmp_lg_u32 s36, 0', 's_cbranch_scc1 L_k3_done',
              's_mov_b32 s66, 256', 's_mov_b32 s67, 0x20000', 's_not_b32 s70, s70', 'v_mov_b32 v14, s70', 'v_mov_b32 v15, s72', 'v_mov_b32 v16, 0',
              's_mov_b64 exec, 1', 'buffer_atomic_umax v14, v16, s[64:67], 0 offen offset:24', 'buffer_atomic_umax v15, v16, s[64:67], 0 offen offset:28', 's_mov_b64 exec, -1',
              's_cmp_lg_u32 s2, 0', 's_cbranch_scc1 L_k3_done',
              's_add_u32 s76, s8, 0x4000000', 's_addc_u32 s77, s9, 0', 's_mov_b32 s78, 0x200000', 's_mov_b32 s79, 0x20000', 'v_lshlrev_b32 v17, 10, v2']
        for q in range(4):
            L_ += [f's_mov_b32 s50, {q * 65536}', 'buffer_load_dwordx4 v[20:23], v17, s[76:79], s50 offen offset:512', 's_waitcnt vmcnt(0)', 'v_not_b32 v20, v20',
                   'buffer_atomic_umax v20, v16, s[64:67], 0 offen', 'buffer_atomic_umax v22, v16, s[64:67], 0 offen offset:4', 's_waitcnt vmcnt(0)',
                   f's_mov_b32 s50, {0x100000 + q * 1024}', 'buffer_load_dwordx4 v[20:23], v3, s[76:79], s50 offen', 's_waitcnt vmcnt(0)', 'v_not_b32 v23, v20',
                   'buffer_atomic_umax v23, v16, s[64:67], 0 offen offset:8', 'buffer_atomic_umax v20, v16, s[64:67], 0 offen offset:12',
                   'buffer_atomic_umax v21, v16, s[64:67], 0 offen offset:16', 'buffer_atomic_umax v22, v16, s[64:67], 0 offen offset:20', 's_waitcnt vmcnt(0)']
        for x in L_:
            Z.raw('  ' + x)
    Z.label('L_k3_done')
    z('s_endpgm')
    return P.text() + Q.text() + T.text() + Z.text()


HEADER = open('cdna_kernels/' + NAME + '.s.ref').read().split('; Override launch')[0]


def desc(name, nv=256):
    return f'''.p2align 6
.amdhsa_kernel {name}
  .amdhsa_next_free_vgpr {nv}
  .amdhsa_next_free_sgpr 102
  .amdhsa_accum_offset {nv}
  .amdhsa_group_segment_fixed_size 0
  .amdhsa_kernarg_size 104
  .amdhsa_user_sgpr_count 2
  .amdhsa_user_sgpr_kernarg_segment_ptr 1
  .amdhsa_system_sgpr_workgroup_id_x 1
.end_amdhsa_kernel
'''


def main():
    out = HEADER
    out += '; @launch kernel=attn_kernel grid=(256,1,1) block=(512,1,1) lds=163840\n'
    if CFG['k2v'] == 2:
        out += '; @launch kernel=oproj_kernel grid=(256,1,1) block=(512,1,1) lds=143360\n'
        out += '; @launch kernel=red_kernel grid=(256,1,1) block=(448,1,1) lds=0\n'
    else:
        out += '; @launch kernel=oproj_kernel grid=(224,1,1) block=(512,1,1) lds=163840\n'
    for i in range(CFG['extra']):
        out += '; @launch kernel=nop_kernel grid=(1,1,1) block=(64,1,1) lds=0\n'
    out += '.amdgcn_target "amdgcn-amd-amdhsa--gfx950"\n.text\n.globl attn_kernel\n.globl oproj_kernel\n'
    out += gen_k1() + (('.globl red_kernel\n' + gen_k2b()) if CFG['k2v'] == 2 else gen_k2())
    if CFG['extra']:
        out += '.globl nop_kernel\n.p2align 8\n.type nop_kernel,@function\nnop_kernel:\n  s_endpgm\n'
    out += '.section .rodata,"a"\n' + desc('attn_kernel') + desc('oproj_kernel') + (desc('red_kernel', 40) if CFG['k2v'] == 2 else '') + (desc('nop_kernel') if CFG['extra'] else '')
    path = sys.argv[1] if len(sys.argv) > 1 else 'cdna_kernels/' + NAME + '.s'
    open(path, 'w').write(out)
    import subprocess
    r = subprocess.run(['clang', '-x', 'assembler', '-target', 'amdgcn-amd-amdhsa', '-mcpu=gfx950', '-c', path, '-o', 'chk.o'], capture_output=True, text=True)
    print('wrote', path, len(out), 'bytes', 'ASM OK' if r.returncode == 0 else 'ASM FAIL\n' + r.stderr[:600])


main()
```
